```python
import torch

def _softmax(x, axis=-1):
    return torch.softmax(x, dim=axis)
def _gelu(x):
    return torch.nn.functional.gelu(x, approximate="tanh")
def _silu(x):
    return torch.nn.functional.silu(x)
def _sigmoid(x):
    return torch.sigmoid(x)
def _layernorm(x, axis=-1, eps=1e-5):
    m = x.mean(dim=axis, keepdim=True)
    v = x.var(dim=axis, keepdim=True, unbiased=False)
    return (x - m) / torch.sqrt(v + eps)
def _scatter_add(tgt, idx, src, axis=0):
    return tgt.clone().index_add_(axis, idx, src)
def _segment_sum(src, seg, n):
    out = torch.zeros((n,) + src.shape[1:], dtype=src.dtype)
    return out.index_add_(0, seg, src)
def _pad(x, pw):
    flat = tuple(v for pair in reversed(pw) for v in pair)
    return torch.nn.functional.pad(x, flat)

kernel_name = 'interleave_layers__sliding_block_cached__mixer_channel_mlp__decode'

def setup_inputs():

    _w = (lambda a: (lambda t: t.to(torch.bfloat16) if t.is_floating_point() else t)(torch.as_tensor(a)))
    def _A_setup():
        B, Sq, D = 1, 1, 448
        Hq, Hkv, Sk, Dh = 16, 8, 65536, 256
        assert Hq % Hkv == 0, (Hq, Hkv)
        return {
            "x": _w((lambda *s: torch.randn(*s, dtype=torch.bfloat16) * 0.05)(B, Sq, D)),
            "k_cache": _w((lambda *s: torch.randn(*s, dtype=torch.bfloat16) * 3.2)(B, Hkv, Sk, Dh)),
            "v_cache": _w((lambda *s: torch.randn(*s, dtype=torch.bfloat16) * 3.2)(B, Hkv, Sk, Dh)),
            "wq": _w((lambda *s: torch.randn(*s, dtype=torch.bfloat16) * 3.2)(D, Hq * Dh) * (D ** -0.5)),
            "wo": _w((lambda *s: torch.randn(*s, dtype=torch.bfloat16) * 3.2)(Hq * Dh, D) * ((Hq * Dh) ** -0.5)),
        }
    _A_in = _A_setup()

    def _B_setup():
        B, S, D, F = 1, 1, 448, 1792
        return {
            "x": _w((lambda *s: torch.randn(*s, dtype=torch.bfloat16) * 0.05)(B, S, D)),
            "w1": _w((lambda *s: torch.randn(*s, dtype=torch.bfloat16) * 3.2)(D, F) * (D ** -0.5)),
            "b1": _w((lambda *s: torch.randn(*s, dtype=torch.bfloat16) * 3.2)(F)),
            "w2": _w((lambda *s: torch.randn(*s, dtype=torch.bfloat16) * 3.2)(F, D) * (F ** -0.5)),
            "b2": _w((lambda *s: torch.randn(*s, dtype=torch.bfloat16) * 3.2)(D)),
        }
    _B_in = _B_setup()

    return {
        "A_x": _A_in["x"],
        "A_k_cache": _A_in["k_cache"],
        "A_v_cache": _A_in["v_cache"],
        "A_wq": _A_in["wq"],
        "A_wo": _A_in["wo"],
        "B_x": _B_in["x"],
        "B_w1": _B_in["w1"],
        "B_b1": _B_in["b1"],
        "B_w2": _B_in["w2"],
        "B_b2": _B_in["b2"],
    }

def reference(A_x, A_k_cache, A_v_cache, A_wq, A_wo, B_x, B_w1, B_b1, B_w2, B_b2):
    def _A_ref(x, k_cache, v_cache, wq, wo):
        B, Sq, D = x.shape
        Hq, Dh = 16, 256
        Hkv, Sk = k_cache.shape[1], k_cache.shape[2]
        W = min(4096, max(256, Sk // 4))
        rep = Hq // Hkv
        q = (lambda x, *d: x.permute(*d))((x @ wq).reshape(B, Sq, Hq, Dh), 0, 2, 1, 3)
        k = (lambda x, n, axis: torch.repeat_interleave(x, n, dim=axis))(k_cache[:, :, Sk - W:, :], rep, axis=1)
        v = (lambda x, n, axis: torch.repeat_interleave(x, n, dim=axis))(v_cache[:, :, Sk - W:, :], rep, axis=1)
        scores = torch.einsum("bhqd,bhkd->bhqk", q, k) * (Dh ** -0.5)
        p = _softmax(scores, axis=-1)
        o = torch.einsum("bhqk,bhkd->bhqd", p, v)
        return (lambda x, *d: x.permute(*d))(o, 0, 2, 1, 3).reshape(B, Sq, Hq * Dh) @ wo

    def _B_ref(x, w1, b1, w2, b2):
        y = _layernorm(x, axis=-1)
        h = _gelu(torch.einsum("bsd,df->bsf", y, w1) + b1)
        return torch.einsum("bsf,fd->bsd", h, w2) + b2

    x = A_x
    x = x + _A_ref(_layernorm(x, axis=-1), A_k_cache, A_v_cache, A_wq, A_wo)
    x = x + _B_ref(_layernorm(x, axis=-1), B_w1, B_b1, B_w2, B_b2)
    x = x + _A_ref(_layernorm(x, axis=-1), A_k_cache, A_v_cache, A_wq, A_wo)
    x = x + _B_ref(_layernorm(x, axis=-1), B_w1, B_b1, B_w2, B_b2)
    return x
```

```python
import sys

NAME = "interleave_layers__sliding_block_cached__mixer_channel_mlp__decode"

Q = [0x0000, 0x2000]
O = [0x4000, 0x6000]
ML = [0x8000, 0x9000]
X1 = [0xA000, 0xA400]
X2 = 0xA800
H = [0xB000, 0xC000]
P = [0x10000, 0x90000]
CLR_BASE = 0x2000
CLR_PER_WG = 5120
WS_SIZE = 0x2000 + 256 * CLR_PER_WG
TS_BASE = 0x180000

VROW = 544
QL = 0
PL = QL + 3 * 512
ST = PL + 3 * 256
WQS = ST + 64
W1S = WQS + 14336
YL = W1S + 14336
YL2 = YL + 1024
RED = YL2 + 1024
RED2 = RED + 64
VSTB = RED2 + 64
VST = 0
LDS_SIZE = VSTB + 128 * VROW

POLL_LIMIT = 1 << 22

import os
DIAG = int(os.environ.get("DIAG", "0"))
DLY = dict(p=0, o=0, x1=0, h=0, x2=0, q=0)
for k in DLY:
    DLY[k] = int(os.environ.get("DLY_" + k, DLY[k]))


class A:
    def __init__(self):
        self.l = []
        self.n = 0

    def __call__(self, s):
        self.l.append("    " + s)

    def lab(self, s):
        self.l.append(s + ":")

    def new(self, p="L"):
        self.n += 1
        return "%s_%d" % (p, self.n)

    def text(self):
        return "\n".join(self.l) + "\n"


a = A()


def vr(lo, n):
    return "v[%d:%d]" % (lo, lo + n - 1) if n > 1 else "v%d" % lo


def sr(lo, n):
    return "s[%d:%d]" % (lo, lo + n - 1) if n > 1 else "s%d" % lo


S_X, S_K, S_V, S_WQ, S_WO, S_BX, S_W1, S_B1, S_W2, S_B2, S_OUT, S_DBG, S_WS = 4, 6, 8, 10, 12, 14, 16, 18, 20, 22, 24, 26, 28
S_WAVE, S_G, S_C = 30, 31, 3
SRD_WS = 32
SRD_A = 36
SRD_B = 40
SRD_C = 44
SRD_D = 48
S_T0 = 52
S_CNT = 76
S_SEL0, S_SEL1 = 78, 79
S_EXEC = 80
S_TS = 84
S_TSOFF = 86

V_LANE = 1


def srd(dst, base, size, off_sgpr=None):
    if off_sgpr is None:
        a("s_mov_b32 s%d, s%d" % (dst, base))
        a("s_and_b32 s%d, s%d, 0xffff" % (dst + 1, base + 1))
    else:
        a("s_add_u32 s%d, s%d, s%d" % (dst, base, off_sgpr))
        a("s_addc_u32 s%d, s%d, 0" % (dst + 1, base + 1))
        a("s_and_b32 s%d, s%d, 0xffff" % (dst + 1, dst + 1))
    a("s_mov_b32 s%d, 0x%x" % (dst + 2, size))
    a("s_mov_b32 s%d, 0x00020000" % (dst + 3))


def stamp(idx, vt=62):
    if not DIAG:
        return
    a("s_memrealtime %s" % sr(S_TS, 2))
    a("s_waitcnt lgkmcnt(0)")
    a("v_mov_b32 v%d, s%d" % (vt, S_TS))
    a("v_mov_b32 v%d, 0" % (vt + 1))
    a("s_lshl_b32 s%d, s2, 8" % S_TSOFF)
    a("s_add_u32 s%d, s%d, 0x%x" % (S_TSOFF, S_TSOFF, idx * 4))
    a("s_mov_b64 %s, exec" % sr(S_EXEC + 2, 2))
    a("s_mov_b64 exec, 1")
    a("buffer_store_dword v%d, v%d, %s, s%d offen" % (vt, vt + 1, sr(88, 4), S_TSOFF))
    a("s_mov_b64 exec, %s" % sr(S_EXEC + 2, 2))


def set_exec_lt(n):
    if n >= 64:
        a("s_mov_b64 exec, -1")
    elif n == 32:
        a("s_mov_b32 exec_lo, -1")
        a("s_mov_b32 exec_hi, 0")
    elif n < 32:
        a("s_mov_b32 exec_lo, 0x%x" % ((1 << n) - 1))
        a("s_mov_b32 exec_hi, 0")
    else:
        a("s_mov_b32 exec_lo, -1")
        a("s_mov_b32 exec_hi, 0x%x" % ((1 << (n - 32)) - 1))


def exec_all():
    a("s_mov_b64 exec, -1")


def poll(loads, vtmp, delay=0):
    if delay:
        d = delay
        while d > 0:
            a("s_sleep %d" % min(d, 127))
            d -= min(d, 127)
    a("s_mov_b32 s%d, 0" % S_CNT)
    top = a.new("Lpoll")
    done = a.new("Lpolld")
    a.lab(top)
    regs = []
    for (d, n, vo, so, imm) in loads:
        op = {1: "buffer_load_dword", 2: "buffer_load_dwordx2", 4: "buffer_load_dwordx4"}[n]
        a("%s %s, v%d, %s, %s offen offset:%d sc1" % (op, vr(d, n), vo, sr(SRD_WS, 4), so, imm))
        regs += list(range(d, d + n))
    a("s_waitcnt vmcnt(0)")
    cur = None
    i = 0
    while i < len(regs):
        if cur is None:
            if len(regs) - i >= 3:
                a("v_max3_u32 v%d, v%d, v%d, v%d" % (vtmp, regs[i], regs[i + 1], regs[i + 2]))
                i += 3
            elif len(regs) - i == 2:
                a("v_max_u32 v%d, v%d, v%d" % (vtmp, regs[i], regs[i + 1]))
                i += 2
            else:
                a("v_mov_b32 v%d, v%d" % (vtmp, regs[i]))
                i += 1
            cur = vtmp
        else:
            if len(regs) - i >= 2:
                a("v_max3_u32 v%d, v%d, v%d, v%d" % (vtmp, vtmp, regs[i], regs[i + 1]))
                i += 2
            else:
                a("v_max_u32 v%d, v%d, v%d" % (vtmp, vtmp, regs[i]))
                i += 1
    a("v_cmp_eq_u32 vcc, -1, v%d" % vtmp)
    a("s_add_u32 s%d, s%d, 1" % (S_CNT, S_CNT))
    a("s_cbranch_vccz %s" % done)
    a("s_cmp_lt_u32 s%d, 0x%x" % (S_CNT, POLL_LIMIT))
    a("s_cbranch_scc1 %s" % top)
    a.lab(done)


def dpp_reduce64(op, regs):
    steps = ["row_ror:8", "row_ror:4", "row_ror:2", "row_ror:1"]
    for st in steps:
        for r in regs:
            a("%s_dpp v%d, v%d, v%d %s row_mask:0xf bank_mask:0xf" % (op, r, r, r, st))
        if len(regs) < 3:
            a("s_nop %d" % (2 - len(regs)))
    for st, rm in (("row_bcast:15", "0xa"), ("row_bcast:31", "0xc")):
        for r in regs:
            a("%s_dpp v%d, v%d, v%d %s row_mask:%s bank_mask:0xf" % (op, r, r, r, st, rm))
        if len(regs) < 3:
            a("s_nop %d" % (2 - len(regs)))


def dpp_reduce_row(op, regs):
    for st in ["row_ror:8", "row_ror:4", "row_ror:2", "row_ror:1"]:
        for r in regs:
            a("%s_dpp v%d, v%d, v%d %s row_mask:0xf bank_mask:0xf" % (op, r, r, r, st))
        if len(regs) < 3:
            a("s_nop %d" % (2 - len(regs)))


def dpp_reduce32(op, regs):
    for st in ["row_ror:8", "row_ror:4", "row_ror:2", "row_ror:1"]:
        for r in regs:
            a("%s_dpp v%d, v%d, v%d %s row_mask:0xf bank_mask:0xf" % (op, r, r, r, st))
        if len(regs) < 3:
            a("s_nop %d" % (2 - len(regs)))
    for r in regs:
        a("%s_dpp v%d, v%d, v%d row_bcast:15 row_mask:0xa bank_mask:0xf" % (op, r, r, r))
    if len(regs) < 3:
        a("s_nop %d" % (2 - len(regs)))


LOG2E = 0x3fb8aa3b
INV448 = 0x3b124925
EPS = 0x3727c5ac


def layernorm(X, Y, F, T, vmaskf, vmaskb):
    for i in range(4):
        a("v_lshlrev_b32 v%d, 16, v%d" % (F + 2 * i, X + i))
        a("v_and_b32 v%d, 0xffff0000, v%d" % (F + 2 * i + 1, X + i))
    a("v_add_f32 v%d, v%d, v%d" % (T, F, F + 1))
    a("v_add_f32 v%d, v%d, v%d" % (T + 1, F + 2, F + 3))
    a("v_add_f32 v%d, v%d, v%d" % (T + 2, F + 4, F + 5))
    a("v_add_f32 v%d, v%d, v%d" % (T + 3, F + 6, F + 7))
    a("v_add_f32 v%d, v%d, v%d" % (T, T, T + 1))
    a("v_add_f32 v%d, v%d, v%d" % (T + 2, T + 2, T + 3))
    a("v_add_f32 v%d, v%d, v%d" % (T, T, T + 2))
    a("s_nop 1")
    dpp_reduce64("v_add_f32", [T])
    a("v_readlane_b32 s%d, v%d, 63" % (S_T0, T))
    a("s_nop 1")
    a("v_mov_b32 v%d, s%d" % (T + 1, S_T0))
    a("v_mul_f32 v%d, 0x%x, v%d" % (T + 1, INV448, T + 1))
    a("v_sub_f32 v%d, v%d, v%d" % (T + 2, F, T + 1))
    a("v_mul_f32 v%d, v%d, v%d" % (T, T + 2, T + 2))
    for i in range(1, 8):
        a("v_sub_f32 v%d, v%d, v%d" % (T + 2, F + i, T + 1))
        a("v_fmac_f32 v%d, v%d, v%d" % (T, T + 2, T + 2))
    a("v_mul_f32 v%d, v%d, v%d" % (T, T, vmaskf))
    a("s_nop 1")
    dpp_reduce64("v_add_f32", [T])
    a("v_readlane_b32 s%d, v%d, 63" % (S_T0, T))
    a("s_nop 1")
    a("v_mov_b32 v%d, s%d" % (T + 2, S_T0))
    a("v_mul_f32 v%d, 0x%x, v%d" % (T + 2, INV448, T + 2))
    a("v_cvt_pk_bf16_f32 v%d, v%d, v%d" % (T + 3, T + 1, T + 2))
    a("v_lshlrev_b32 v%d, 16, v%d" % (T + 1, T + 3))
    a("v_and_b32 v%d, 0xffff0000, v%d" % (T + 2, T + 3))
    a("v_add_f32 v%d, 0x%x, v%d" % (T + 2, EPS, T + 2))
    a("v_cvt_pk_bf16_f32 v%d, v%d, v%d" % (T + 2, T + 2, T + 2))
    a("v_and_b32 v%d, 0xffff0000, v%d" % (T + 2, T + 2))
    a("v_sqrt_f32 v%d, v%d" % (T + 2, T + 2))
    a("s_nop 0")
    a("v_cvt_pk_bf16_f32 v%d, v%d, v%d" % (T + 2, T + 2, T + 2))
    a("v_and_b32 v%d, 0xffff0000, v%d" % (T + 2, T + 2))
    a("v_rcp_f32 v%d, v%d" % (T + 2, T + 2))
    for i in range(4):
        a("v_sub_f32 v%d, v%d, v%d" % (F + 2 * i, F + 2 * i, T + 1))
        a("v_sub_f32 v%d, v%d, v%d" % (F + 2 * i + 1, F + 2 * i + 1, T + 1))
        a("v_cvt_pk_bf16_f32 v%d, v%d, v%d" % (T + 3, F + 2 * i, F + 2 * i + 1))
        a("v_lshlrev_b32 v%d, 16, v%d" % (T + 4, T + 3))
        a("v_and_b32 v%d, 0xffff0000, v%d" % (T + 5, T + 3))
        a("v_mul_f32 v%d, v%d, v%d" % (T + 4, T + 4, T + 2))
        a("v_mul_f32 v%d, v%d, v%d" % (T + 5, T + 5, T + 2))
        a("v_cvt_pk_bf16_f32 v%d, v%d, v%d" % (Y + i, T + 4, T + 5))
        a("v_and_b32 v%d, v%d, v%d" % (Y + i, Y + i, vmaskb))


def gemv16(Yp, ylds, vaddr_w, vaddr_r, AF, BF, D):
    a("ds_write_b128 v%d, %s offset:%d" % (vaddr_w, vr(Yp, 4), ylds))
    a("s_waitcnt lgkmcnt(0)")
    for s in range(14):
        a("ds_read_b128 %s, v%d offset:%d" % (vr(AF + 4 * s, 4), vaddr_r, ylds + 64 * s))
    for s in range(14):
        a("s_waitcnt lgkmcnt(%d)" % (13 - s))
        a("v_mfma_f32_16x16x32_bf16 %s, %s, %s, %s" % (vr(D, 4), vr(AF + 4 * s, 4), vr(BF + 4 * s, 4), "0" if s == 0 else vr(D, 4)))
    a("s_nop 7")
    a("s_nop 1")


a.l.append("; @launch grid=(256,1,1) block=(512,1,1) lds=%d" % LDS_SIZE)
a.l.append('.amdgcn_target "amdgcn-amd-amdhsa--gfx950"')
a.l.append(".text")
a.l.append(".globl %s_kernel" % NAME)
a.l.append(".p2align 8")
a.l.append(".type %s_kernel,@function" % NAME)
a.lab("%s_kernel" % NAME)
a("s_cmp_ge_u32 s2, 256")
a("s_cbranch_scc1 L_end")
a("s_load_dwordx16 s[4:19], s[0:1], 0")
a("s_load_dwordx8 s[20:27], s[0:1], 64")
a("s_load_dwordx2 s[28:29], s[0:1], 96")
a("v_and_b32 v1, 63, v0")
a("v_lshrrev_b32 v2, 6, v0")
a("s_and_b32 s%d, s2, 7" % S_G)
a("v_readfirstlane_b32 s%d, v2" % S_WAVE)
a("s_lshr_b32 s%d, s2, 3" % S_C)
a("s_mov_b32 s%d, 0x05040100" % S_SEL0)
a("s_mov_b32 s%d, 0x07060302" % S_SEL1)
a("s_waitcnt lgkmcnt(0)")
srd(SRD_WS, S_WS, WS_SIZE)
if DIAG:
    a("s_add_u32 s88, s%d, 0x%x" % (S_WS, TS_BASE))
    a("s_addc_u32 s89, s%d, 0" % (S_WS + 1))
    a("s_and_b32 s89, s89, 0xffff")
    a("s_mov_b32 s90, 0x10000")
    a("s_mov_b32 s91, 0x00020000")
a("s_cmp_ge_u32 s%d, 4" % S_WAVE)
a("s_cbranch_scc1 L_G")

KF = 64
VF = 128
QF = 192
ACC = 192
PF = 32
SC = 16
V_OK0, V_OK1, V_OV, V_VW, V_VR, V_QR, V_PR, V_PW, V_L4, V_Z = 2, 3, 4, 5, 6, 7, 8, 9, 10, 11
a("s_lshl_b32 s%d, s%d, 25" % (S_T0, S_G))
a("s_lshl_b32 s%d, s%d, 16" % (S_T0 + 1, S_C))
a("s_add_u32 s%d, s%d, s%d" % (S_T0, S_T0, S_T0 + 1))
a("s_lshl_b32 s%d, s%d, 14" % (S_T0 + 1, S_WAVE))
a("s_add_u32 s%d, s%d, s%d" % (S_T0, S_T0, S_T0 + 1))
a("s_add_u32 s%d, s%d, %d" % (S_T0, S_T0, 61440 * 512))
srd(SRD_A, S_K, 16384, S_T0)
srd(SRD_B, S_V, 16384, S_T0)
a("v_and_b32 v12, 15, v1")
a("v_lshrrev_b32 v13, 4, v1")
a("v_lshlrev_b32 v%d, 9, v12" % V_OK0)
a("v_lshl_add_u32 v%d, v13, 4, v%d" % (V_OK0, V_OK0))
a("v_add_u32 v%d, 8192, v%d" % (V_OK1, V_OK0))
a("v_lshlrev_b32 v%d, 4, v1" % V_OV)
for kb in range(2):
    for s in range(8):
        a("buffer_load_dwordx4 %s, v%d, %s, 0 offen offset:%d" % (vr(KF + kb * 32 + s * 4, 4), V_OK0 if kb == 0 else V_OK1, sr(SRD_A, 4), s * 64))
for j in range(1, 4):
    a("s_mov_b32 s%d, %d" % (S_T0 + j, 4096 * j))
for i in range(16):
    so = "0" if i < 4 else "s%d" % (S_T0 + i // 4)
    a("buffer_load_dwordx4 %s, v%d, %s, %s offen offset:%d" % (vr(VF + i * 4, 4), V_OV, sr(SRD_B, 4), so, (i % 4) * 1024))
a("v_lshrrev_b32 v14, 5, v1")
a("v_mul_u32_u24 v14, %d, v14" % VROW)
a("v_and_b32 v15, 31, v1")
a("v_lshl_add_u32 v%d, v15, 4, v14" % V_VW)
a("s_mul_i32 s%d, s%d, %d" % (S_T0, S_WAVE, 32 * VROW))
a("s_add_u32 s%d, s%d, %d" % (S_T0, S_T0, VSTB))
a("v_add_u32 v%d, s%d, v%d" % (V_VW, S_T0, V_VW))
a("v_lshrrev_b32 v14, 2, v12")
a("v_lshl_add_u32 v14, v13, 3, v14")
a("v_mul_u32_u24 v14, %d, v14" % VROW)
a("v_and_b32 v15, 3, v12")
a("v_lshl_add_u32 v%d, v15, 3, v14" % V_VR)
a("s_lshl_b32 s%d, s%d, 7" % (S_T0, S_WAVE))
a("s_add_u32 s%d, s%d, %d" % (S_T0, S_T0, VSTB))
a("v_add_u32 v%d, s%d, v%d" % (V_VR, S_T0, V_VR))
a("v_min_u32 v14, 2, v12")
a("v_lshlrev_b32 v15, 9, v14")
a("v_lshl_add_u32 v%d, v13, 4, v15" % V_QR)
a("v_lshlrev_b32 v15, 8, v14")
a("v_lshl_add_u32 v%d, v13, 4, v15" % V_PR)
a("s_lshl_b32 s%d, s%d, 6" % (S_T0, S_WAVE))
a("v_lshl_add_u32 v%d, v1, 1, s%d" % (V_PW, S_T0))
a("v_lshlrev_b32 v%d, 2, v1" % V_L4)
a("v_mov_b32 v%d, 0" % V_Z)
a("s_lshl_b32 s%d, s%d, 4" % (S_T0, S_WAVE))
a("v_mov_b32 v24, s%d" % S_T0)
V_STW = 24

for L in range(2):
    a("s_barrier")
    for s in range(8):
        a("ds_read_b128 %s, v%d offset:%d" % (vr(QF + 4 * s, 4), V_QR, QL + 64 * s))
    if L == 0:
        a("s_waitcnt vmcnt(16)")
    for s in range(8):
        a("s_waitcnt lgkmcnt(%d)" % (7 - s))
        for kb in range(2):
            a("v_mfma_f32_16x16x32_bf16 %s, %s, %s, %s" % (vr(SC + 4 * kb, 4), vr(QF + 4 * s, 4), vr(KF + kb * 32 + 4 * s, 4), "0" if s == 0 else vr(SC + 4 * kb, 4)))
    a("s_nop 7")
    a("s_nop 1")
    a("v_cvt_pk_bf16_f32 v48, v16, v17")
    a("v_cvt_pk_bf16_f32 v49, v20, v21")
    a("v_lshlrev_b32 v50, 16, v48")
    a("v_and_b32 v51, 0xffff0000, v48")
    a("v_lshlrev_b32 v52, 16, v49")
    a("v_and_b32 v53, 0xffff0000, v49")
    for r in range(50, 54):
        a("v_mul_f32 v%d, 0x3d800000, v%d" % (r, r))
    a("v_max_f32 v54, v50, v52")
    a("v_max_f32 v55, v51, v53")
    a("s_nop 1")
    dpp_reduce_row("v_max_f32", [54, 55])
    a("s_nop 0")
    a("v_sub_f32 v50, v50, v54")
    a("v_sub_f32 v52, v52, v54")
    a("v_sub_f32 v51, v51, v55")
    a("v_sub_f32 v53, v53, v55")
    for r in range(50, 54):
        a("v_mul_f32 v%d, 0x%x, v%d" % (r, LOG2E, r))
    for r in range(50, 54):
        a("v_exp_f32 v%d, v%d" % (r, r))
    a("s_nop 0")
    a("v_add_f32 v57, v50, v52")
    a("v_add_f32 v59, v51, v53")
    a("v_cvt_pk_bf16_f32 v48, v50, v51")
    a("v_cvt_pk_bf16_f32 v49, v52, v53")
    dpp_reduce_row("v_add_f32", [57, 59])
    a("v_mov_b32 v56, v54")
    a("v_mov_b32 v58, v55")
    set_exec_lt(16)
    a("ds_write_b16 v%d, v48 offset:%d" % (V_PW, PL))
    a("ds_write_b16_d16_hi v%d, v48 offset:%d" % (V_PW, PL + 256))
    a("ds_write_b16 v%d, v49 offset:%d" % (V_PW, PL + 32))
    a("ds_write_b16_d16_hi v%d, v49 offset:%d" % (V_PW, PL + 256 + 32))
    set_exec_lt(1)
    a("ds_write_b128 v%d, v[56:59] offset:%d" % (V_STW, ST))
    exec_all()
    if L == 0:
        for i in range(16):
            a("s_waitcnt vmcnt(%d)" % (15 - i))
            a("ds_write_b128 v%d, %s offset:%d" % (V_VW, vr(VF + 4 * i, 4), VST + i * 2 * VROW))
    a("s_waitcnt lgkmcnt(0)")
    a("s_barrier")
    if L == 0:
        for s in range(4):
            for b in range(4):
                for hf in range(2):
                    a("ds_read_b64_tr_b16 %s, v%d offset:%d" % (vr(VF + (s * 4 + b) * 4 + hf * 2, 2), V_VR, VST + s * 32 * VROW + hf * 4 * VROW + b * 32))
    for s in range(4):
        a("ds_read_b128 %s, v%d offset:%d" % (vr(PF + 4 * s, 4), V_PR, PL + 64 * s))
    for w in range(4):
        a("ds_read_b128 %s, v%d offset:%d" % (vr(48 + 4 * w, 4), V_Z, ST + 16 * w))
    a("s_waitcnt lgkmcnt(0)")
    for s in range(4):
        for b in range(4):
            a("v_mfma_f32_16x16x32_bf16 %s, %s, %s, 0" % (vr(ACC + (s * 4 + b) * 4, 4), vr(PF + 4 * s, 4), vr(VF + (s * 4 + b) * 4, 4)))
    a("v_max3_f32 v16, v48, v52, v56")
    a("v_max3_f32 v18, v50, v54, v58")
    a("v_max_f32 v16, v16, v60")
    a("v_max_f32 v18, v18, v62")
    for w in range(4):
        a("v_sub_f32 v%d, v%d, v16" % (48 + 4 * w, 48 + 4 * w))
        a("v_sub_f32 v%d, v%d, v18" % (50 + 4 * w, 50 + 4 * w))
    for w in range(4):
        a("v_mul_f32 v%d, 0x%x, v%d" % (48 + 4 * w, LOG2E, 48 + 4 * w))
        a("v_mul_f32 v%d, 0x%x, v%d" % (50 + 4 * w, LOG2E, 50 + 4 * w))
    for w in range(4):
        a("v_exp_f32 v%d, v%d" % (48 + 4 * w, 48 + 4 * w))
        a("v_exp_f32 v%d, v%d" % (50 + 4 * w, 50 + 4 * w))
    a("s_nop 0")
    a("v_mul_f32 v17, v48, v49")
    a("v_mul_f32 v19, v50, v51")
    for w in range(1, 4):
        a("v_fmac_f32 v17, v%d, v%d" % (48 + 4 * w, 49 + 4 * w))
        a("v_fmac_f32 v19, v%d, v%d" % (50 + 4 * w, 51 + 4 * w))
    a("s_nop 7")
    for b in range(4):
        for h in range(2):
            a("v_mul_f32 v%d, v%d, v%d" % (20 + 0, 48 + 2 * h, ACC + b * 4 + h)) if False else None
    for b in range(4):
        for h in range(2):
            d = 32 + b * 2 + h
            a("v_mul_f32 v%d, v%d, v%d" % (d, 48 + 2 * h, ACC + b * 4 + h))
    for s in range(1, 4):
        for b in range(4):
            for h in range(2):
                d = 32 + b * 2 + h
                a("v_fmac_f32 v%d, v%d, v%d" % (d, 48 + 4 * s + 2 * h, ACC + (s * 4 + b) * 4 + h))
    a("s_lshl_b32 s%d, s%d, 16" % (S_T0, S_G))
    a("s_lshl_b32 s%d, s%d, 13" % (S_T0 + 1, S_WAVE))
    a("s_add_u32 s%d, s%d, s%d" % (S_T0, S_T0, S_T0 + 1))
    a("s_lshl_b32 s%d, s%d, 6" % (S_T0 + 1, S_C))
    a("s_add_u32 s%d, s%d, s%d" % (S_T0, S_T0, S_T0 + 1))
    a("s_add_u32 s%d, s%d, 0x%x" % (S_T0, S_T0, P[L]))
    a("s_add_u32 s%d, s%d, 4096" % (S_T0 + 1, S_T0))
    a("s_add_u32 s%d, s%d, 32768" % (S_T0 + 2, S_T0))
    a("s_add_u32 s%d, s%d, 36864" % (S_T0 + 3, S_T0))
    set_exec_lt(16)
    for h in range(2):
        for b in range(4):
            a("buffer_store_dword v%d, v%d, %s, s%d offen offset:%d sc1" % (32 + b * 2 + h, V_L4, sr(SRD_WS, 4), S_T0 + 2 * h + b // 2, (b % 2) * 2048))
    skip = a.new("Lskipml")
    a("s_cmp_lg_u32 s%d, 0" % S_WAVE)
    a("s_cbranch_scc1 %s" % skip)
    set_exec_lt(1)
    a("s_lshl_b32 s%d, s%d, 9" % (S_T0, S_G))
    a("s_lshl_b32 s%d, s%d, 3" % (S_T0 + 1, S_C))
    a("s_add_u32 s%d, s%d, s%d" % (S_T0, S_T0, S_T0 + 1))
    a("s_add_u32 s%d, s%d, 0x%x" % (S_T0, S_T0, ML[L]))
    a("buffer_store_dwordx2 v[16:17], v%d, %s, s%d offen sc1" % (V_Z, sr(SRD_WS, 4), S_T0))
    a("buffer_store_dwordx2 v[18:19], v%d, %s, s%d offen offset:256 sc1" % (V_Z, sr(SRD_WS, 4), S_T0))
    a.lab(skip)
    exec_all()
    a("s_barrier")
    a("s_barrier")
a("s_endpgm")

a.lab("L_G")
BF = 64
WO = 128
W2 = 144
WOR = 160
W2R = 176
AF = 192
XP = 16
YP = 20
FT = 24
TT = 32
DD = 40
V_MF, V_MB = 2, 3
V_L16 = 4
V_AR = 5
V_TR = 6
V_PAIR = 7
V_ZERO = 8
V_T = 9
V_XRES0, V_XRES1, V_B20, V_B21 = 10, 11, 12, 13
V_B1 = 14
V_L32 = 15
S_J = 77
a("s_sub_u32 s%d, s%d, 4" % (S_J, S_WAVE))
a("v_cmp_gt_u32 vcc, 56, v1")
a("v_mov_b32 v%d, 0" % V_ZERO)
a("v_lshlrev_b32 v%d, 4, v1" % V_L16)
a("v_cndmask_b32 v%d, 0, 1.0, vcc" % V_MF)
a("v_cndmask_b32 v%d, 0, -1, vcc" % V_MB)
a("v_lshrrev_b32 v%d, 4, v1" % V_T)
a("v_lshlrev_b32 v%d, 4, v%d" % (V_AR, V_T))
a("v_and_b32 v32, 15, v1")
a("v_lshrrev_b32 v33, 2, v32")
a("v_lshl_add_u32 v33, v%d, 3, v33" % V_T)
a("v_lshlrev_b32 v33, 5, v33")
a("v_and_b32 v34, 3, v32")
a("v_lshl_add_u32 v%d, v34, 3, v33" % V_TR)
a("v_lshrrev_b32 v%d, 1, v1" % V_PAIR)
a("v_lshlrev_b32 v%d, 2, v%d" % (V_PAIR, V_PAIR))
a("v_lshlrev_b32 v%d, 5, v1" % V_L32)
for i in range(4):
    a("v_mov_b32 v%d, 0" % (XP + i))


def load_w16(srd_lo, base_ptr, rowstride, col0_sgpr, lds_base):
    a("s_lshl_b32 s%d, s%d, 1" % (S_T0, col0_sgpr))
    srd(srd_lo, base_ptr, 448 * rowstride, S_T0)
    a("s_sub_u32 s%d, s%d, s%d" % (srd_lo + 2, srd_lo + 2, S_T0))
    a("v_lshrrev_b32 v32, 1, v1")
    a("s_mov_b32 s%d, %d" % (S_T0 + 1, rowstride))
    a("v_mul_lo_u32 v32, v32, s%d" % (S_T0 + 1))
    a("v_and_b32 v33, 1, v1")
    a("v_lshl_add_u32 v32, v33, 4, v32")
    for i in range(14):
        a("s_mov_b32 s%d, %d" % (S_T0 + 2 + i, i * 32 * rowstride))
    for i in range(14):
        a("buffer_load_dwordx4 %s, v32, %s, s%d offen" % (vr(BF + 4 * i, 4), sr(srd_lo, 4), S_T0 + 2 + i))


def stage_w16(lds_base, extra_outstanding=0):
    for i in range(14):
        a("s_waitcnt vmcnt(%d)" % (13 - i + extra_outstanding))
        a("ds_write_b128 v%d, %s offset:%d" % (V_L16, vr(BF + 4 * i, 4), lds_base + 1024 * i))
    a("s_waitcnt lgkmcnt(0)")
    for s in range(14):
        for hf in range(2):
            a("ds_read_b64_tr_b16 %s, v%d offset:%d" % (vr(BF + 4 * s + 2 * hf, 2), V_TR, lds_base + s * 1024 + hf * 128))
    a("s_waitcnt lgkmcnt(0)")


def load_wo_w2():
    a("s_mul_i32 s%d, s%d, 112" % (S_T0, S_G))
    a("s_lshl_b32 s%d, s%d, 2" % (S_T0 + 1, S_C))
    a("s_add_u32 s%d, s%d, s%d" % (S_T0, S_T0, S_T0 + 1))
    srd(SRD_C, S_WO, 4096 * 896, S_T0)
    a("s_sub_u32 s%d, s%d, s%d" % (SRD_C + 2, SRD_C + 2, S_T0))
    srd(SRD_D, S_W2, 1792 * 896, S_T0)
    a("s_sub_u32 s%d, s%d, s%d" % (SRD_D + 2, SRD_D + 2, S_T0))
    a("s_mov_b32 s%d, %d" % (S_T0 + 1, 16 * 896))
    a("v_mul_lo_u32 v34, v1, s%d" % (S_T0 + 1))
    a("s_mul_i32 s%d, s%d, %d" % (S_T0 + 2, S_J, 1024 * 896))
    for i in range(16):
        a("s_add_u32 s%d, s%d, %d" % (S_T0 + 3 + (i % 4), S_T0 + 2, i * 896))
        a("buffer_load_dword v%d, v34, %s, s%d offen" % (WOR + i, sr(SRD_C, 4), S_T0 + 3 + (i % 4)))
    a("s_mov_b32 s%d, %d" % (S_T0 + 1, 8 * 896))
    a("v_mul_lo_u32 v35, v1, s%d" % (S_T0 + 1))
    a("s_mul_i32 s%d, s%d, %d" % (S_T0 + 2, S_J, 448 * 896))
    for i in range(8):
        a("v_mov_b32 v%d, 0" % (W2R + i))
    set_exec_lt(56)
    for i in range(8):
        a("s_add_u32 s%d, s%d, %d" % (S_T0 + 3 + (i % 4), S_T0 + 2, i * 896))
        a("buffer_load_dword v%d, v35, %s, s%d offen" % (W2R + i, sr(SRD_D, 4), S_T0 + 3 + (i % 4)))
    exec_all()


def perm_wo_w2():
    a("s_waitcnt vmcnt(0)")
    for i in range(8):
        a("v_perm_b32 v%d, v%d, v%d, s%d" % (WO + i, WOR + 2 * i + 1, WOR + 2 * i, S_SEL0))
        a("v_perm_b32 v%d, v%d, v%d, s%d" % (WO + 8 + i, WOR + 2 * i + 1, WOR + 2 * i, S_SEL1))
    for i in range(4):
        a("v_perm_b32 v%d, v%d, v%d, s%d" % (W2 + i, W2R + 2 * i + 1, W2R + 2 * i, S_SEL0))
        a("v_perm_b32 v%d, v%d, v%d, s%d" % (W2 + 4 + i, W2R + 2 * i + 1, W2R + 2 * i, S_SEL1))


def store_pairs16(vsrc, ws_off_sgpr, vt):
    a("s_nop 1")
    a("v_mov_b32_dpp v%d, v%d quad_perm:[1,0,3,2] row_mask:0xf bank_mask:0xf" % (vt, vsrc))
    a("s_nop 0")
    a("v_cvt_pk_bf16_f32 v%d, v%d, v%d" % (vt, vsrc, vt))
    a("s_mov_b32 exec_lo, 0x5555")
    a("s_mov_b32 exec_hi, 0")
    a("buffer_store_dword v%d, v%d, %s, s%d offen sc1" % (vt, V_PAIR, sr(SRD_WS, 4), ws_off_sgpr))
    exec_all()


def qproj(L):
    layernorm(XP, YP, FT, TT, V_MF, V_MB)
    gemv16(YP, YL, V_L16, V_AR, AF, BF, DD)
    a("s_lshl_b32 s%d, s%d, 10" % (S_T0, S_G))
    a("s_lshl_b32 s%d, s%d, 5" % (S_T0 + 1, S_C))
    a("s_add_u32 s%d, s%d, s%d" % (S_T0, S_T0, S_T0 + 1))
    a("s_add_u32 s%d, s%d, 0x%x" % (S_T0, S_T0, Q[L]))
    store_pairs16(DD, S_T0, TT)


def gather_q(L, polled):
    a("s_lshl_b32 s%d, s%d, 10" % (S_T0 + 8, S_G))
    a("s_add_u32 s%d, s%d, 0x%x" % (S_T0 + 8, S_T0 + 8, Q[L]))
    if polled:
        poll([(FT, 4, V_L16, "s%d" % (S_T0 + 8), 0)], TT, DLY["q"])
    else:
        a("buffer_load_dwordx4 %s, v%d, %s, s%d offen sc1" % (vr(FT, 4), V_L16, sr(SRD_WS, 4), S_T0 + 8))
        a("s_waitcnt vmcnt(0)")
    a("ds_write_b128 v%d, %s offset:%d" % (V_L16, vr(FT, 4), QL))
    a("s_waitcnt lgkmcnt(0)")


a("s_cmp_eq_u32 s%d, 0" % S_J)
a("s_cbranch_scc1 L_G0")
a("s_cmp_eq_u32 s%d, 1" % S_J)
a("s_cbranch_scc1 L_G1")
a("s_cmp_eq_u32 s%d, 2" % S_J)
a("s_cbranch_scc1 L_G2")
a("s_branch L_G3")


def common_wo(L, j):
    skip = a.new("Lskipwo")
    a("s_cmp_ge_u32 s%d, 28" % S_C)
    a("s_cbranch_scc1 %s" % skip)
    if L == 0:
        perm_wo_w2()
    a("s_mov_b32 s%d, 0x%x" % (S_T0 + 8, O[L] + 2048 * j))
    poll([(44, 4, V_L32, "s%d" % (S_T0 + 8), 0), (48, 4, V_L32, "s%d" % (S_T0 + 8), 16)], TT, DLY["o"])
    a("v_mov_b32 v%d, 0" % TT)
    a("v_mov_b32 v%d, 0" % (TT + 1))
    for i in range(8):
        a("v_dot2_f32_bf16 v%d, v%d, v%d, v%d" % (TT, WO + i, 44 + i, TT))
        a("v_dot2_f32_bf16 v%d, v%d, v%d, v%d" % (TT + 1, WO + 8 + i, 44 + i, TT + 1))
    a("s_nop 3")
    dpp_reduce64("v_add_f32", [TT, TT + 1])
    a("s_mov_b32 exec_lo, 0")
    a("s_mov_b32 exec_hi, 0x80000000")
    a("ds_write_b64 v%d, %s offset:%d" % (V_ZERO, vr(TT, 2), RED + 8 * j))
    exec_all()
    a("s_waitcnt lgkmcnt(0)")
    a.lab(skip)


def common_w2(L, j):
    skip = a.new("Lskipw2")
    a("s_cmp_ge_u32 s%d, 28" % S_C)
    a("s_cbranch_scc1 %s" % skip)
    a("s_mov_b32 s%d, 0x%x" % (S_T0 + 8, H[L] + 896 * j))
    for i in range(4):
        a("v_mov_b32 v%d, 0" % (44 + i))
    set_exec_lt(56)
    poll([(44, 4, V_L16, "s%d" % (S_T0 + 8), 0)], TT, DLY["h"])
    exec_all()
    a("v_mov_b32 v%d, 0" % TT)
    a("v_mov_b32 v%d, 0" % (TT + 1))
    for i in range(4):
        a("v_dot2_f32_bf16 v%d, v%d, v%d, v%d" % (TT, W2 + i, 44 + i, TT))
        a("v_dot2_f32_bf16 v%d, v%d, v%d, v%d" % (TT + 1, W2 + 4 + i, 44 + i, TT + 1))
    a("s_nop 3")
    dpp_reduce64("v_add_f32", [TT, TT + 1])
    a("s_mov_b32 exec_lo, 0")
    a("s_mov_b32 exec_hi, 0x80000000")
    a("ds_write_b64 v%d, %s offset:%d" % (V_ZERO, vr(TT, 2), RED2 + 8 * j))
    exec_all()
    a("s_waitcnt lgkmcnt(0)")
    a.lab(skip)


def maybe_load_wo_w2():
    skip = a.new("Lskipld")
    a("s_cmp_ge_u32 s%d, 28" % S_C)
    a("s_cbranch_scc1 %s" % skip)
    load_wo_w2()
    a.lab(skip)


a.lab("L_G0")
a("s_mul_i32 s%d, s2, %d" % (S_T0, CLR_PER_WG))
a("s_add_u32 s%d, s%d, 0x%x" % (S_T0, S_T0, CLR_BASE))
a("s_add_u32 s%d, s%d, 4096" % (S_T0 + 1, S_T0))
for i in range(4):
    a("v_mov_b32 v%d, -1" % (FT + i))
for i in range(5):
    a("buffer_store_dwordx4 %s, v%d, %s, s%d offen offset:%d sc1" % (vr(FT, 4), V_L16, sr(SRD_WS, 4), S_T0 + i // 4, (i % 4) * 1024))
srd(SRD_B, S_X, 896)
a("buffer_load_dwordx4 %s, v%d, %s, 0 offen" % (vr(XP, 4), V_L16, sr(SRD_B, 4)))
a("s_lshl_b32 s%d, s%d, 9" % (S_T0 + 20, S_G))
a("s_lshl_b32 s%d, s%d, 4" % (S_T0 + 21, S_C))
a("s_add_u32 s%d, s%d, s%d" % (S_T0 + 20, S_T0 + 20, S_T0 + 21))
load_w16(SRD_A, S_WQ, 8192, S_T0 + 20, WQS)
stage_w16(WQS)
qproj(0)
a("s_waitcnt vmcnt(0)")
srd(SRD_B, S_DBG, 256)
a("v_mov_b32 v%d, 1" % TT)
a("v_mov_b32 v%d, s2" % (TT + 1))
set_exec_lt(1)
a("buffer_store_byte v%d, v%d, %s, 0 offen sc1" % (TT, TT + 1, sr(SRD_B, 4)))
exec_all()
maybe_load_wo_w2()
for L in range(2):
    a("s_barrier")
    a("s_barrier")
    common_wo(L, 0)
    a("s_barrier")
    common_w2(L, 0)
    a("s_barrier")
    if L == 0:
        a("s_mov_b32 s%d, 0x%x" % (S_T0 + 8, X2))
        set_exec_lt(56)
        poll([(XP, 4, V_L16, "s%d" % (S_T0 + 8), 0)], TT, DLY["x2"])
        exec_all()
        qproj(1)
a("s_endpgm")

a.lab("L_G1")
skip = a.new("Lskipw1")
a("s_cmp_ge_u32 s%d, 14" % S_C)
a("s_cbranch_scc1 %s" % skip)
a("s_mul_i32 s%d, s%d, 224" % (S_T0 + 20, S_G))
a("s_lshl_b32 s%d, s%d, 4" % (S_T0 + 21, S_C))
a("s_add_u32 s%d, s%d, s%d" % (S_T0 + 20, S_T0 + 20, S_T0 + 21))
srd(SRD_B, S_B1, 3584)
a("v_lshlrev_b32 v%d, 1, v1" % TT)
a("s_lshl_b32 s%d, s%d, 1" % (S_T0 + 22, S_T0 + 20))
a("buffer_load_ushort v%d, v%d, %s, s%d offen" % (V_B1, TT, sr(SRD_B, 4), S_T0 + 22))
load_w16(SRD_A, S_W1, 3584, S_T0 + 20, W1S)
stage_w16(W1S)
a("v_lshlrev_b32 v%d, 16, v%d" % (V_B1, V_B1))
a.lab(skip)
maybe_load_wo_w2()
for L in range(2):
    a("s_barrier")
    a("s_barrier")
    common_wo(L, 1)
    a("s_barrier")
    skip = a.new("Lskiph")
    a("s_cmp_ge_u32 s%d, 14" % S_C)
    a("s_cbranch_scc1 %s" % skip)
    a("s_mov_b32 s%d, 0x%x" % (S_T0 + 8, X1[L]))
    set_exec_lt(56)
    poll([(XP, 4, V_L16, "s%d" % (S_T0 + 8), 0)], TT, DLY["x1"])
    exec_all()
    layernorm(XP, YP, FT, TT, V_MF, V_MB)
    layernorm(YP, XP, FT, TT, V_MF, V_MB)
    gemv16(XP, YL2, V_L16, V_AR, AF, BF, DD)
    a("v_cvt_pk_bf16_f32 v%d, v%d, v%d" % (TT, DD, DD))
    a("v_and_b32 v%d, 0xffff0000, v%d" % (TT, TT))
    a("v_add_f32 v%d, v%d, v%d" % (TT, TT, V_B1))
    a("v_cvt_pk_bf16_f32 v%d, v%d, v%d" % (TT, TT, TT))
    a("v_and_b32 v%d, 0xffff0000, v%d" % (TT, TT))
    a("v_mul_f32 v%d, v%d, v%d" % (TT + 1, TT, TT))
    a("v_mov_b32 v%d, 0x3f4c422a" % (TT + 2))
    a("v_fmac_f32 v%d, 0x3d122279, v%d" % (TT + 2, TT + 1))
    a("v_mul_f32 v%d, v%d, v%d" % (TT + 2, TT + 2, TT))
    a("v_mul_f32 v%d, 0xc038aa3b, v%d" % (TT + 2, TT + 2))
    a("v_exp_f32 v%d, v%d" % (TT + 2, TT + 2))
    a("s_nop 0")
    a("v_add_f32 v%d, 1.0, v%d" % (TT + 2, TT + 2))
    a("v_rcp_f32 v%d, v%d" % (TT + 2, TT + 2))
    a("s_nop 0")
    a("v_mul_f32 v%d, v%d, v%d" % (TT + 3, TT, TT + 2))
    a("s_mul_i32 s%d, s%d, 448" % (S_T0, S_G))
    a("s_lshl_b32 s%d, s%d, 5" % (S_T0 + 1, S_C))
    a("s_add_u32 s%d, s%d, s%d" % (S_T0, S_T0, S_T0 + 1))
    a("s_add_u32 s%d, s%d, 0x%x" % (S_T0, S_T0, H[L]))
    store_pairs16(TT + 3, S_T0, TT + 4)
    a.lab(skip)
    common_w2(L, 1)
    a("s_barrier")
a("s_endpgm")

a.lab("L_G2")
for i in range(4):
    a("v_mov_b32 v%d, 0" % (FT + i))
set_exec_lt(32)
a("ds_write_b128 v%d, %s offset:%d" % (V_L16, vr(FT, 4), QL + 1024))
set_exec_lt(16)
a("ds_write_b128 v%d, %s offset:%d" % (V_L16, vr(FT, 4), PL + 512))
exec_all()
srd(SRD_B, S_DBG, 256)
a("v_lshlrev_b32 v%d, 2, v1" % TT)
a("s_mov_b32 s%d, 0" % S_CNT)
a("s_mov_b32 s%d, 0x01010101" % (S_T0 + 9))
a.lab("L_flagpoll")
a("buffer_load_dword v%d, v%d, %s, 0 offen sc1" % (TT + 1, TT, sr(SRD_B, 4)))
a("s_waitcnt vmcnt(0)")
a("v_cmp_ne_u32 vcc, s%d, v%d" % (S_T0 + 9, TT + 1))
a("s_add_u32 s%d, s%d, 1" % (S_CNT, S_CNT))
a("s_cbranch_vccz L_flagdone")
a("s_sleep 2")
a("s_cmp_lt_u32 s%d, 0x%x" % (S_CNT, POLL_LIMIT))
a("s_cbranch_scc1 L_flagpoll")
a.lab("L_flagdone")
gather_q(0, False)
for L in range(2):
    a("s_barrier")
    if L == 0:
        maybe_load_wo_w2()
    a("s_barrier")
    a("v_and_b32 v%d, 31, v1" % TT)
    a("v_lshrrev_b32 v%d, 5, v1" % (TT + 1))
    a("v_lshlrev_b32 v%d, 6, v%d" % (TT + 2, TT))
    a("v_lshl_add_u32 v%d, v%d, 5, v%d" % (TT + 2, TT + 1, TT + 2))
    a("v_lshlrev_b32 v%d, 3, v%d" % (TT + 3, TT))
    a("s_lshl_b32 s%d, s%d, 16" % (S_T0 + 8, S_G))
    a("s_lshl_b32 s%d, s%d, 11" % (S_T0 + 9, S_C))
    a("s_add_u32 s%d, s%d, s%d" % (S_T0 + 8, S_T0 + 8, S_T0 + 9))
    a("s_add_u32 s%d, s%d, 0x%x" % (S_T0 + 8, S_T0 + 8, P[L]))
    a("s_lshl_b32 s%d, s%d, 9" % (S_T0 + 9, S_G))
    a("s_lshr_b32 s%d, s%d, 4" % (S_T0 + 10, S_C))
    a("s_lshl_b32 s%d, s%d, 8" % (S_T0 + 10, S_T0 + 10))
    a("s_add_u32 s%d, s%d, s%d" % (S_T0 + 9, S_T0 + 9, S_T0 + 10))
    a("s_add_u32 s%d, s%d, 0x%x" % (S_T0 + 9, S_T0 + 9, ML[L]))
    poll([(44, 4, TT + 2, "s%d" % (S_T0 + 8), 0), (48, 4, TT + 2, "s%d" % (S_T0 + 8), 16), (52, 2, TT + 3, "s%d" % (S_T0 + 9), 0)], TT + 4, DLY["p"])
    a("v_mov_b32 v54, v52")
    a("s_nop 1")
    dpp_reduce64("v_max_f32", [54])
    a("v_readlane_b32 s%d, v54, 63" % S_T0)
    a("s_nop 1")
    a("v_subrev_f32 v54, s%d, v52" % S_T0)
    a("v_mul_f32 v54, 0x%x, v54" % LOG2E)
    a("v_exp_f32 v54, v54")
    a("s_nop 0")
    for i in range(8):
        a("v_mul_f32 v%d, v%d, v54" % (44 + i, 44 + i))
    a("v_mul_f32 v53, v53, v54")
    a("s_nop 1")
    dpp_reduce32("v_add_f32", list(range(44, 52)) + [53])
    a("s_nop 0")
    a("v_rcp_f32 v53, v53")
    a("s_nop 0")
    for i in range(8):
        a("v_mul_f32 v%d, v%d, v53" % (44 + i, 44 + i))
    for i in range(4):
        a("v_cvt_pk_bf16_f32 v%d, v%d, v%d" % (56 + i, 44 + 2 * i, 45 + 2 * i))
    a("s_lshl_b32 s%d, s%d, 10" % (S_T0, S_G))
    a("s_lshl_b32 s%d, s%d, 5" % (S_T0 + 1, S_C))
    a("s_add_u32 s%d, s%d, s%d" % (S_T0, S_T0, S_T0 + 1))
    a("s_add_u32 s%d, s%d, 0x%x" % (S_T0, S_T0, O[L]))
    a("v_lshlrev_b32 v%d, 4, v%d" % (TT + 1, TT + 1))
    a("s_mov_b32 exec_lo, 0x80000000")
    a("s_mov_b32 exec_hi, 0x80000000")
    a("buffer_store_dwordx4 v[56:59], v%d, %s, s%d offen sc1" % (TT + 1, sr(SRD_WS, 4), S_T0))
    exec_all()
    common_wo(L, 2)
    a("s_barrier")
    common_w2(L, 2)
    a("s_barrier")
    if L == 0:
        gather_q(1, True)
a("s_endpgm")

a.lab("L_G3")
a("s_mul_i32 s%d, s%d, 112" % (S_T0 + 24, S_G))
a("s_lshl_b32 s%d, s%d, 2" % (S_T0 + 1, S_C))
a("s_add_u32 s%d, s%d, s%d" % (S_T0 + 24, S_T0 + 24, S_T0 + 1))
S_COLB = 87
a("s_mov_b32 s%d, s%d" % (S_COLB, S_T0 + 24))
srd(SRD_A, S_X, 896)
srd(SRD_B, S_B2, 896)
a("buffer_load_dword v%d, v%d, %s, s%d offen" % (TT, V_ZERO, sr(SRD_A, 4), S_COLB))
a("buffer_load_dword v%d, v%d, %s, s%d offen" % (TT + 1, V_ZERO, sr(SRD_B, 4), S_COLB))
a("s_waitcnt vmcnt(0)")
a("v_lshlrev_b32 v%d, 16, v%d" % (V_XRES0, TT))
a("v_and_b32 v%d, 0xffff0000, v%d" % (V_XRES1, TT))
a("v_lshlrev_b32 v%d, 16, v%d" % (V_B20, TT + 1))
a("v_and_b32 v%d, 0xffff0000, v%d" % (V_B21, TT + 1))
srd(SRD_A, S_OUT, 896)
maybe_load_wo_w2()
for L in range(2):
    a("s_barrier")
    a("s_barrier")
    common_wo(L, 3)
    a("s_barrier")
    skip = a.new("Lskipx1")
    a("s_cmp_ge_u32 s%d, 28" % S_C)
    a("s_cbranch_scc1 %s" % skip)
    a("ds_read_b128 v[44:47], v%d offset:%d" % (V_ZERO, RED))
    a("ds_read_b128 v[48:51], v%d offset:%d" % (V_ZERO, RED + 16))
    a("s_waitcnt lgkmcnt(0)")
    a("v_add_f32 v44, v44, v46")
    a("v_add_f32 v45, v45, v47")
    a("v_add_f32 v48, v48, v50")
    a("v_add_f32 v49, v49, v51")
    a("v_add_f32 v44, v44, v48")
    a("v_add_f32 v45, v45, v49")
    a("v_cvt_pk_bf16_f32 v46, v44, v45")
    a("v_lshlrev_b32 v44, 16, v46")
    a("v_and_b32 v45, 0xffff0000, v46")
    a("v_add_f32 v44, v44, v%d" % V_XRES0)
    a("v_add_f32 v45, v45, v%d" % V_XRES1)
    a("v_cvt_pk_bf16_f32 v46, v44, v45")
    a("v_lshlrev_b32 v%d, 16, v46" % V_XRES0)
    a("v_and_b32 v%d, 0xffff0000, v46" % V_XRES1)
    a("s_add_u32 s%d, s%d, 0x%x" % (S_T0, S_COLB, X1[L]))
    set_exec_lt(1)
    a("buffer_store_dword v46, v%d, %s, s%d offen sc1" % (V_ZERO, sr(SRD_WS, 4), S_T0))
    exec_all()
    a.lab(skip)
    common_w2(L, 3)
    a("s_barrier")
    skip = a.new("Lskipx2")
    a("s_cmp_ge_u32 s%d, 28" % S_C)
    a("s_cbranch_scc1 %s" % skip)
    a("ds_read_b128 v[44:47], v%d offset:%d" % (V_ZERO, RED2))
    a("ds_read_b128 v[48:51], v%d offset:%d" % (V_ZERO, RED2 + 16))
    a("s_waitcnt lgkmcnt(0)")
    a("v_add_f32 v44, v44, v46")
    a("v_add_f32 v45, v45, v47")
    a("v_add_f32 v48, v48, v50")
    a("v_add_f32 v49, v49, v51")
    a("v_add_f32 v44, v44, v48")
    a("v_add_f32 v45, v45, v49")
    a("v_cvt_pk_bf16_f32 v46, v44, v45")
    a("v_lshlrev_b32 v44, 16, v46")
    a("v_and_b32 v45, 0xffff0000, v46")
    a("v_add_f32 v44, v44, v%d" % V_B20)
    a("v_add_f32 v45, v45, v%d" % V_B21)
    a("v_cvt_pk_bf16_f32 v46, v44, v45")
    a("v_lshlrev_b32 v44, 16, v46")
    a("v_and_b32 v45, 0xffff0000, v46")
    a("v_add_f32 v44, v44, v%d" % V_XRES0)
    a("v_add_f32 v45, v45, v%d" % V_XRES1)
    a("v_cvt_pk_bf16_f32 v46, v44, v45")
    a("v_lshlrev_b32 v%d, 16, v46" % V_XRES0)
    a("v_and_b32 v%d, 0xffff0000, v46" % V_XRES1)
    set_exec_lt(1)
    if L == 0:
        a("s_add_u32 s%d, s%d, 0x%x" % (S_T0, S_COLB, X2))
        a("buffer_store_dword v46, v%d, %s, s%d offen sc1" % (V_ZERO, sr(SRD_WS, 4), S_T0))
    else:
        a("buffer_store_dword v46, v%d, %s, s%d offen" % (V_ZERO, sr(SRD_A, 4), S_COLB))
    exec_all()
    a.lab(skip)
a.lab("L_end")
a("s_endpgm")

a.l.append('.section .rodata,"a"')
a.l.append(".p2align 6")
a.l.append(".amdhsa_kernel %s_kernel" % NAME)
a.l.append("  .amdhsa_next_free_vgpr 256")
a.l.append("  .amdhsa_next_free_sgpr 102")
a.l.append("  .amdhsa_accum_offset 256")
a.l.append("  .amdhsa_group_segment_fixed_size 0")
a.l.append("  .amdhsa_kernarg_size 104")
a.l.append("  .amdhsa_user_sgpr_count 2")
a.l.append("  .amdhsa_user_sgpr_kernarg_segment_ptr 1")
a.l.append("  .amdhsa_system_sgpr_workgroup_id_x 1")
a.l.append(".end_amdhsa_kernel")

out = sys.argv[1] if len(sys.argv) > 1 else "cdna_kernels/%s.s" % NAME
open(out, "w").write(a.text())
print("wrote", out, "lines", len(a.l), "lds", LDS_SIZE)
```

```python
import sys

NAME = "interleave_layers__sliding_block_cached__mixer_channel_mlp__decode"

Q0T = 0x0000
EPOCH = 0x4000
DONE = 0x5000
Q = [None, 0x6000]
ML = [0x8000, 0x9000]
X1 = [0xA000, 0xA400]
X2 = 0xA800
P = [0x10000, 0x90000]
R1 = [0x110000, 0x180000]
R2 = [0x1F0000, 0x228000]
CLR_BASE = 0x6000
CLR_PER_WG = 10240
WS_SIZE = CLR_BASE + 256 * CLR_PER_WG
TS_BASE = 0x300000

VROW = 544
QL = 0
PL = QL + 3 * 512
ST = PL + 3 * 256
WQS = ST + 64
W1S = WQS + 14336
YL = W1S + 14336
YL2 = YL + 1024
RED = YL2 + 1024
RED2 = RED + 64
VSTB = RED2 + 64
VST = 0
LDS_SIZE = VSTB + 128 * VROW

POLL_LIMIT = 1 << 22

import os
DIAG = int(os.environ.get("DIAG", "0"))
DLY = dict(p=0, r1=0, x1=0, r2=0, x2=0, q=0, f=100, fr=16, r=4, win=16, b0late=0, wnt=1, w1late=1, p0=10, r0=4, vafter=1, wdly=2, n1=8, cdly=2, prio=3, n0=0)
for k in DLY:
    DLY[k] = int(os.environ.get("DLY_" + k, DLY[k]))


class A:
    def __init__(self):
        self.l = []
        self.n = 0

    def __call__(self, s):
        self.l.append("    " + s)

    def lab(self, s):
        self.l.append(s + ":")

    def new(self, p="L"):
        self.n += 1
        return "%s_%d" % (p, self.n)

    def text(self):
        return "\n".join(self.l) + "\n"


a = A()


def vr(lo, n):
    return "v[%d:%d]" % (lo, lo + n - 1) if n > 1 else "v%d" % lo


def sr(lo, n):
    return "s[%d:%d]" % (lo, lo + n - 1) if n > 1 else "s%d" % lo


S_X, S_K, S_V, S_WQ, S_WO, S_BX, S_W1, S_B1, S_W2, S_B2, S_OUT, S_DBG, S_WS = 4, 6, 8, 10, 12, 14, 16, 18, 20, 22, 24, 26, 28
S_WAVE, S_G, S_C = 30, 31, 3
SRD_WS = 32
SRD_A = 36
SRD_B = 40
SRD_C = 44
SRD_D = 48
S_T0 = 52
S_CNT = 76
S_SEL0, S_SEL1 = 78, 79
S_EXEC = 80
S_TS = 84
S_TSOFF = 86
S_TAG = 94

V_LANE = 1


def srd(dst, base, size, off_sgpr=None):
    if off_sgpr is None:
        a("s_mov_b32 s%d, s%d" % (dst, base))
        a("s_and_b32 s%d, s%d, 0xffff" % (dst + 1, base + 1))
    else:
        a("s_add_u32 s%d, s%d, s%d" % (dst, base, off_sgpr))
        a("s_addc_u32 s%d, s%d, 0" % (dst + 1, base + 1))
        a("s_and_b32 s%d, s%d, 0xffff" % (dst + 1, dst + 1))
    a("s_mov_b32 s%d, 0x%x" % (dst + 2, size))
    a("s_mov_b32 s%d, 0x00020000" % (dst + 3))


V_TS = 31


def stamp(idx):
    if not DIAG:
        return
    a("s_memrealtime %s" % sr(S_TS, 2))
    a("s_waitcnt lgkmcnt(0)")
    a("v_writelane_b32 v%d, s%d, %d" % (V_TS, S_TS, idx))


def stamp_init():
    if not DIAG:
        return
    a("v_mov_b32 v%d, 0x5a5a5a5a" % V_TS)


def stamp_flush():
    if not DIAG:
        return
    a("s_lshl_b32 s%d, s2, 11" % S_TSOFF)
    a("s_lshl_b32 s%d, s%d, 8" % (S_TS, S_WAVE))
    a("s_add_u32 s%d, s%d, s%d" % (S_TSOFF, S_TSOFF, S_TS))
    a("v_lshlrev_b32 v0, 2, v1")
    a("s_mov_b64 exec, -1")
    a("buffer_store_dword v%d, v0, %s, s%d offen" % (V_TS, sr(88, 4), S_TSOFF))


def set_exec_lt(n):
    if n >= 64:
        a("s_mov_b64 exec, -1")
    elif n == 32:
        a("s_mov_b32 exec_lo, -1")
        a("s_mov_b32 exec_hi, 0")
    elif n < 32:
        a("s_mov_b32 exec_lo, 0x%x" % ((1 << n) - 1))
        a("s_mov_b32 exec_hi, 0")
    else:
        a("s_mov_b32 exec_lo, -1")
        a("s_mov_b32 exec_hi, 0x%x" % ((1 << (n - 32)) - 1))


def exec_all():
    a("s_mov_b64 exec, -1")


NPOLL = 0


def poll(loads, vtmp, delay=0, first_sleep=False, retry=None):
    if delay:
        d = delay
        while d > 0:
            a("s_sleep %d" % min(d, 127))
            d -= min(d, 127)
    a("s_mov_b32 s%d, 0" % S_CNT)
    top = a.new("Lpoll")
    done = a.new("Lpolld")
    a.lab(top)
    regs = []
    for (d, n, vo, so, imm) in loads:
        op = {1: "buffer_load_dword", 2: "buffer_load_dwordx2", 4: "buffer_load_dwordx4"}[n]
        a("%s %s, v%d, %s, %s offen offset:%d sc1" % (op, vr(d, n), vo, sr(SRD_WS, 4), so, imm))
        regs += list(range(d, d + n))
    a("s_waitcnt vmcnt(0)")
    cur = None
    i = 0
    while i < len(regs):
        if cur is None:
            if len(regs) - i >= 3:
                a("v_max3_u32 v%d, v%d, v%d, v%d" % (vtmp, regs[i], regs[i + 1], regs[i + 2]))
                i += 3
            elif len(regs) - i == 2:
                a("v_max_u32 v%d, v%d, v%d" % (vtmp, regs[i], regs[i + 1]))
                i += 2
            else:
                a("v_mov_b32 v%d, v%d" % (vtmp, regs[i]))
                i += 1
            cur = vtmp
        else:
            if len(regs) - i >= 2:
                a("v_max3_u32 v%d, v%d, v%d, v%d" % (vtmp, vtmp, regs[i], regs[i + 1]))
                i += 2
            else:
                a("v_max_u32 v%d, v%d, v%d" % (vtmp, vtmp, regs[i]))
                i += 1
    a("v_cmp_eq_u32 vcc, -1, v%d" % vtmp)
    a("s_add_u32 s%d, s%d, 1" % (S_CNT, S_CNT))
    a("s_cbranch_vccz %s" % done)
    if retry is None:
        retry = DLY["r"]
    if retry:
        a("s_sleep %d" % retry)
    a("s_cmp_lt_u32 s%d, 0x%x" % (S_CNT, POLL_LIMIT))
    a("s_cbranch_scc1 %s" % top)
    a.lab(done)
    if DIAG:
        global NPOLL
        a("v_writelane_b32 v%d, s%d, %d" % (V_TS, S_CNT, 48 + NPOLL))
        NPOLL += 1


def dpp_reduce64(op, regs):
    steps = ["row_ror:8", "row_ror:4", "row_ror:2", "row_ror:1"]
    for st in steps:
        for r in regs:
            a("%s_dpp v%d, v%d, v%d %s row_mask:0xf bank_mask:0xf" % (op, r, r, r, st))
        if len(regs) < 3:
            a("s_nop %d" % (2 - len(regs)))
    for st, rm in (("row_bcast:15", "0xa"), ("row_bcast:31", "0xc")):
        for r in regs:
            a("%s_dpp v%d, v%d, v%d %s row_mask:%s bank_mask:0xf" % (op, r, r, r, st, rm))
        if len(regs) < 3:
            a("s_nop %d" % (2 - len(regs)))


def dpp_reduce_row(op, regs):
    for st in ["row_ror:8", "row_ror:4", "row_ror:2", "row_ror:1"]:
        for r in regs:
            a("%s_dpp v%d, v%d, v%d %s row_mask:0xf bank_mask:0xf" % (op, r, r, r, st))
        if len(regs) < 3:
            a("s_nop %d" % (2 - len(regs)))


def dpp_reduce32(op, regs):
    for st in ["row_ror:8", "row_ror:4", "row_ror:2", "row_ror:1"]:
        for r in regs:
            a("%s_dpp v%d, v%d, v%d %s row_mask:0xf bank_mask:0xf" % (op, r, r, r, st))
        if len(regs) < 3:
            a("s_nop %d" % (2 - len(regs)))
    for r in regs:
        a("%s_dpp v%d, v%d, v%d row_bcast:15 row_mask:0xa bank_mask:0xf" % (op, r, r, r))
    if len(regs) < 3:
        a("s_nop %d" % (2 - len(regs)))


LOG2E = 0x3fb8aa3b
INV448 = 0x3b124925
EPS = 0x3727c5ac


def layernorm(X, Y, F, T, vmaskf, vmaskb):
    for i in range(4):
        a("v_lshlrev_b32 v%d, 16, v%d" % (F + 2 * i, X + i))
        a("v_and_b32 v%d, 0xffff0000, v%d" % (F + 2 * i + 1, X + i))
    a("v_add_f32 v%d, v%d, v%d" % (T, F, F + 1))
    a("v_add_f32 v%d, v%d, v%d" % (T + 1, F + 2, F + 3))
    a("v_add_f32 v%d, v%d, v%d" % (T + 2, F + 4, F + 5))
    a("v_add_f32 v%d, v%d, v%d" % (T + 3, F + 6, F + 7))
    a("v_add_f32 v%d, v%d, v%d" % (T, T, T + 1))
    a("v_add_f32 v%d, v%d, v%d" % (T + 2, T + 2, T + 3))
    a("v_add_f32 v%d, v%d, v%d" % (T, T, T + 2))
    a("s_nop 1")
    dpp_reduce64("v_add_f32", [T])
    a("v_readlane_b32 s%d, v%d, 63" % (S_T0, T))
    a("s_nop 1")
    a("v_mov_b32 v%d, s%d" % (T + 1, S_T0))
    a("v_mul_f32 v%d, 0x%x, v%d" % (T + 1, INV448, T + 1))
    a("v_sub_f32 v%d, v%d, v%d" % (T + 2, F, T + 1))
    a("v_mul_f32 v%d, v%d, v%d" % (T, T + 2, T + 2))
    for i in range(1, 8):
        a("v_sub_f32 v%d, v%d, v%d" % (T + 2, F + i, T + 1))
        a("v_fmac_f32 v%d, v%d, v%d" % (T, T + 2, T + 2))
    a("v_mul_f32 v%d, v%d, v%d" % (T, T, vmaskf))
    a("s_nop 1")
    dpp_reduce64("v_add_f32", [T])
    a("v_readlane_b32 s%d, v%d, 63" % (S_T0, T))
    a("s_nop 1")
    a("v_mov_b32 v%d, s%d" % (T + 2, S_T0))
    a("v_mul_f32 v%d, 0x%x, v%d" % (T + 2, INV448, T + 2))
    a("v_cvt_pk_bf16_f32 v%d, v%d, v%d" % (T + 3, T + 1, T + 2))
    a("v_lshlrev_b32 v%d, 16, v%d" % (T + 1, T + 3))
    a("v_and_b32 v%d, 0xffff0000, v%d" % (T + 2, T + 3))
    a("v_add_f32 v%d, 0x%x, v%d" % (T + 2, EPS, T + 2))
    a("v_cvt_pk_bf16_f32 v%d, v%d, v%d" % (T + 2, T + 2, T + 2))
    a("v_and_b32 v%d, 0xffff0000, v%d" % (T + 2, T + 2))
    a("v_sqrt_f32 v%d, v%d" % (T + 2, T + 2))
    a("s_nop 0")
    a("v_cvt_pk_bf16_f32 v%d, v%d, v%d" % (T + 2, T + 2, T + 2))
    a("v_and_b32 v%d, 0xffff0000, v%d" % (T + 2, T + 2))
    a("v_rcp_f32 v%d, v%d" % (T + 2, T + 2))
    for i in range(4):
        a("v_sub_f32 v%d, v%d, v%d" % (F + 2 * i, F + 2 * i, T + 1))
        a("v_sub_f32 v%d, v%d, v%d" % (F + 2 * i + 1, F + 2 * i + 1, T + 1))
        a("v_cvt_pk_bf16_f32 v%d, v%d, v%d" % (T + 3, F + 2 * i, F + 2 * i + 1))
        a("v_lshlrev_b32 v%d, 16, v%d" % (T + 4, T + 3))
        a("v_and_b32 v%d, 0xffff0000, v%d" % (T + 5, T + 3))
        a("v_mul_f32 v%d, v%d, v%d" % (T + 4, T + 4, T + 2))
        a("v_mul_f32 v%d, v%d, v%d" % (T + 5, T + 5, T + 2))
        a("v_cvt_pk_bf16_f32 v%d, v%d, v%d" % (Y + i, T + 4, T + 5))
        a("v_and_b32 v%d, v%d, v%d" % (Y + i, Y + i, vmaskb))


def gemv16(Yp, ylds, vaddr_w, vaddr_r, AF, BF, D):
    a("ds_write_b128 v%d, %s offset:%d" % (vaddr_w, vr(Yp, 4), ylds))
    a("s_waitcnt lgkmcnt(0)")
    for s in range(14):
        a("ds_read_b128 %s, v%d offset:%d" % (vr(AF + 4 * s, 4), vaddr_r, ylds + 64 * s))
    for s in range(14):
        a("s_waitcnt lgkmcnt(%d)" % (13 - s))
        a("v_mfma_f32_16x16x32_bf16 %s, %s, %s, %s" % (vr(D, 4), vr(AF + 4 * s, 4), vr(BF + 4 * s, 4), "0" if s == 0 else vr(D, 4)))
    a("s_nop 7")
    a("s_nop 1")


a.l.append("; @launch grid=(256,1,1) block=(512,1,1) lds=%d" % LDS_SIZE)
a.l.append('.amdgcn_target "amdgcn-amd-amdhsa--gfx950"')
a.l.append(".text")
a.l.append(".globl %s_kernel" % NAME)
a.l.append(".p2align 8")
a.l.append(".type %s_kernel,@function" % NAME)
a.lab("%s_kernel" % NAME)
a("s_cmp_ge_u32 s2, 256")
a("s_cbranch_scc1 L_end")
a("s_load_dwordx16 s[4:19], s[0:1], 0")
a("s_load_dwordx8 s[20:27], s[0:1], 64")
a("s_load_dwordx2 s[28:29], s[0:1], 96")
a("v_and_b32 v1, 63, v0")
a("v_lshrrev_b32 v2, 6, v0")
a("s_and_b32 s%d, s2, 7" % S_G)
a("v_readfirstlane_b32 s%d, v2" % S_WAVE)
a("s_lshr_b32 s%d, s2, 3" % S_C)
S_CP = 92
a("s_mov_b32 s%d, s%d" % (S_CP, S_C))
a("s_cmp_ge_u32 s%d, 14" % S_CP)
a("s_cselect_b32 s93, 14, 0")
a("s_sub_u32 s%d, s%d, s93" % (S_CP, S_CP))
a("s_cmp_ge_u32 s%d, 14" % S_CP)
a("s_cselect_b32 s93, 14, 0")
a("s_sub_u32 s%d, s%d, s93" % (S_CP, S_CP))
a("s_mov_b32 s%d, 0x05040100" % S_SEL0)
a("s_mov_b32 s%d, 0x07060302" % S_SEL1)
a("s_waitcnt lgkmcnt(0)")
srd(SRD_WS, S_WS, WS_SIZE)
if DIAG:
    a("s_add_u32 s88, s%d, 0x%x" % (S_WS, TS_BASE))
    a("s_addc_u32 s89, s%d, 0" % (S_WS + 1))
    a("s_and_b32 s89, s89, 0xffff")
    a("s_mov_b32 s90, 0x80000")
    a("s_mov_b32 s91, 0x00020000")
a("s_cmp_ge_u32 s%d, 4" % S_WAVE)
a("s_cbranch_scc1 L_G")

KF = 64
VF = 128
QF = 192
ACC = 192
PF = 32
SC = 16
V_OK0, V_OK1, V_OV, V_VW, V_VR, V_QR, V_PR, V_PW, V_L4, V_Z = 2, 3, 4, 5, 6, 7, 8, 9, 10, 11
stamp_init()
stamp(0)
a("s_lshl_b32 s%d, s%d, 25" % (S_T0, S_G))
a("s_lshl_b32 s%d, s%d, 16" % (S_T0 + 1, S_C))
a("s_add_u32 s%d, s%d, s%d" % (S_T0, S_T0, S_T0 + 1))
a("s_lshl_b32 s%d, s%d, 14" % (S_T0 + 1, S_WAVE))
a("s_add_u32 s%d, s%d, s%d" % (S_T0, S_T0, S_T0 + 1))
a("s_add_u32 s%d, s%d, %d" % (S_T0, S_T0, 61440 * 512))
srd(SRD_A, S_K, 16384, S_T0)
srd(SRD_B, S_V, 16384, S_T0)
a("v_and_b32 v12, 15, v1")
a("v_lshrrev_b32 v13, 4, v1")
a("v_lshlrev_b32 v%d, 9, v12" % V_OK0)
a("v_lshl_add_u32 v%d, v13, 4, v%d" % (V_OK0, V_OK0))
a("v_add_u32 v%d, 8192, v%d" % (V_OK1, V_OK0))
a("v_lshlrev_b32 v%d, 4, v1" % V_OV)
a("s_barrier")
for j in range(1, 4):
    a("s_mov_b32 s%d, %d" % (S_T0 + 4 + j, 4096 * j))
WIN = DLY["win"]
nl = 0
for kb in range(2):
    for s in range(8):
        if nl >= WIN:
            a("s_waitcnt vmcnt(%d)" % (WIN - 1))
        a("buffer_load_dwordx4 %s, v%d, %s, 0 offen offset:%d nt" % (vr(KF + kb * 32 + s * 4, 4), V_OK0 if kb == 0 else V_OK1, sr(SRD_A, 4), s * 64))
        nl += 1
A_VLOADS = []
for i in range(16):
    so = "0" if i < 4 else "s%d" % (S_T0 + 4 + i // 4)
    if nl >= WIN and not DLY["vafter"]:
        A_VLOADS.append("s_waitcnt vmcnt(%d)" % (WIN - 1))
    A_VLOADS.append("buffer_load_dwordx4 %s, v%d, %s, %s offen offset:%d nt" % (vr(VF + i * 4, 4), V_OV, sr(SRD_B, 4), so, (i % 4) * 1024))
    nl += 1
a("v_lshrrev_b32 v14, 5, v1")
a("v_mul_u32_u24 v14, %d, v14" % VROW)
a("v_and_b32 v15, 31, v1")
a("v_lshl_add_u32 v%d, v15, 4, v14" % V_VW)
a("s_mul_i32 s%d, s%d, %d" % (S_T0, S_WAVE, 32 * VROW))
a("s_add_u32 s%d, s%d, %d" % (S_T0, S_T0, VSTB))
a("v_add_u32 v%d, s%d, v%d" % (V_VW, S_T0, V_VW))
a("v_lshrrev_b32 v14, 2, v12")
a("v_lshl_add_u32 v14, v13, 3, v14")
a("v_mul_u32_u24 v14, %d, v14" % VROW)
a("v_and_b32 v15, 3, v12")
a("v_lshl_add_u32 v%d, v15, 3, v14" % V_VR)
a("s_lshl_b32 s%d, s%d, 7" % (S_T0, S_WAVE))
a("s_add_u32 s%d, s%d, %d" % (S_T0, S_T0, VSTB))
a("v_add_u32 v%d, s%d, v%d" % (V_VR, S_T0, V_VR))
a("v_min_u32 v14, 2, v12")
a("v_lshlrev_b32 v15, 9, v14")
a("v_lshl_add_u32 v%d, v13, 4, v15" % V_QR)
a("v_lshlrev_b32 v15, 8, v14")
a("v_lshl_add_u32 v%d, v13, 4, v15" % V_PR)
a("s_lshl_b32 s%d, s%d, 6" % (S_T0, S_WAVE))
a("v_lshl_add_u32 v%d, v1, 1, s%d" % (V_PW, S_T0))
a("v_lshlrev_b32 v%d, 2, v1" % V_L4)
a("v_mov_b32 v%d, 0" % V_Z)
a("s_lshl_b32 s%d, s%d, 4" % (S_T0, S_WAVE))
a("v_mov_b32 v24, s%d" % S_T0)
V_STW = 24
for x in A_VLOADS[:DLY["n0"]]:
    a(x)
for x in A_VLOADS[DLY["n0"]:max(DLY["n0"], DLY["n1"])]:
    a(x)
for x in A_VLOADS[max(DLY["n0"], DLY["n1"]):]:
    a(x)
stamp(7)

for L in range(2):
    a("s_barrier")
    stamp(1 + 8 * L)
    if L == 0:
        a("s_waitcnt vmcnt(16)")
    stamp(2 + 8 * L)
    for s in range(8):
        a("ds_read_b128 %s, v%d offset:%d" % (vr(QF + 4 * s, 4), V_QR, QL + 64 * s))
    for s in range(8):
        a("s_waitcnt lgkmcnt(%d)" % (7 - s))
        for kb in range(2):
            a("v_mfma_f32_16x16x32_bf16 %s, %s, %s, %s" % (vr(SC + 4 * kb, 4), vr(QF + 4 * s, 4), vr(KF + kb * 32 + 4 * s, 4), "0" if s == 0 else vr(SC + 4 * kb, 4)))
    a("s_nop 7")
    a("s_nop 1")
    a("v_cvt_pk_bf16_f32 v48, v16, v17")
    a("v_cvt_pk_bf16_f32 v49, v20, v21")
    a("v_lshlrev_b32 v50, 16, v48")
    a("v_and_b32 v51, 0xffff0000, v48")
    a("v_lshlrev_b32 v52, 16, v49")
    a("v_and_b32 v53, 0xffff0000, v49")
    for r in range(50, 54):
        a("v_mul_f32 v%d, 0x3d800000, v%d" % (r, r))
    a("v_max_f32 v54, v50, v52")
    a("v_max_f32 v55, v51, v53")
    a("s_nop 1")
    dpp_reduce_row("v_max_f32", [54, 55])
    a("s_nop 0")
    a("v_sub_f32 v50, v50, v54")
    a("v_sub_f32 v52, v52, v54")
    a("v_sub_f32 v51, v51, v55")
    a("v_sub_f32 v53, v53, v55")
    for r in range(50, 54):
        a("v_mul_f32 v%d, 0x%x, v%d" % (r, LOG2E, r))
    for r in range(50, 54):
        a("v_exp_f32 v%d, v%d" % (r, r))
    a("s_nop 0")
    a("v_add_f32 v57, v50, v52")
    a("v_add_f32 v59, v51, v53")
    a("v_cvt_pk_bf16_f32 v48, v50, v51")
    a("v_cvt_pk_bf16_f32 v49, v52, v53")
    dpp_reduce_row("v_add_f32", [57, 59])
    a("v_mov_b32 v56, v54")
    a("v_mov_b32 v58, v55")
    set_exec_lt(16)
    a("ds_write_b16 v%d, v48 offset:%d" % (V_PW, PL))
    a("ds_write_b16_d16_hi v%d, v48 offset:%d" % (V_PW, PL + 256))
    a("ds_write_b16 v%d, v49 offset:%d" % (V_PW, PL + 32))
    a("ds_write_b16_d16_hi v%d, v49 offset:%d" % (V_PW, PL + 256 + 32))
    set_exec_lt(1)
    a("ds_write_b128 v%d, v[56:59] offset:%d" % (V_STW, ST))
    exec_all()
    stamp(3 + 8 * L)
    if L == 0:
        for i in range(16):
            a("s_waitcnt vmcnt(%d)" % (15 - i))
            a("ds_write_b128 v%d, %s offset:%d" % (V_VW, vr(VF + 4 * i, 4), VST + i * 2 * VROW))
    a("s_waitcnt lgkmcnt(0)")
    stamp(4 + 8 * L)
    a("s_barrier")
    stamp(5 + 8 * L)
    if L == 0:
        for s in range(4):
            for b in range(4):
                for hf in range(2):
                    a("ds_read_b64_tr_b16 %s, v%d offset:%d" % (vr(VF + (s * 4 + b) * 4 + hf * 2, 2), V_VR, VST + s * 32 * VROW + hf * 4 * VROW + b * 32))
    for s in range(4):
        a("ds_read_b128 %s, v%d offset:%d" % (vr(PF + 4 * s, 4), V_PR, PL + 64 * s))
    for w in range(4):
        a("ds_read_b128 %s, v%d offset:%d" % (vr(48 + 4 * w, 4), V_Z, ST + 16 * w))
    a("s_waitcnt lgkmcnt(0)")
    for s in range(4):
        for b in range(4):
            a("v_mfma_f32_16x16x32_bf16 %s, %s, %s, 0" % (vr(ACC + (s * 4 + b) * 4, 4), vr(PF + 4 * s, 4), vr(VF + (s * 4 + b) * 4, 4)))
    a("v_max3_f32 v16, v48, v52, v56")
    a("v_max3_f32 v18, v50, v54, v58")
    a("v_max_f32 v16, v16, v60")
    a("v_max_f32 v18, v18, v62")
    for w in range(4):
        a("v_sub_f32 v%d, v%d, v16" % (48 + 4 * w, 48 + 4 * w))
        a("v_sub_f32 v%d, v%d, v18" % (50 + 4 * w, 50 + 4 * w))
    for w in range(4):
        a("v_mul_f32 v%d, 0x%x, v%d" % (48 + 4 * w, LOG2E, 48 + 4 * w))
        a("v_mul_f32 v%d, 0x%x, v%d" % (50 + 4 * w, LOG2E, 50 + 4 * w))
    for w in range(4):
        a("v_exp_f32 v%d, v%d" % (48 + 4 * w, 48 + 4 * w))
        a("v_exp_f32 v%d, v%d" % (50 + 4 * w, 50 + 4 * w))
    a("s_nop 0")
    a("v_mul_f32 v17, v48, v49")
    a("v_mul_f32 v19, v50, v51")
    for w in range(1, 4):
        a("v_fmac_f32 v17, v%d, v%d" % (48 + 4 * w, 49 + 4 * w))
        a("v_fmac_f32 v19, v%d, v%d" % (50 + 4 * w, 51 + 4 * w))
    a("s_nop 7")
    for b in range(4):
        for h in range(2):
            a("v_mul_f32 v%d, v%d, v%d" % (20 + 0, 48 + 2 * h, ACC + b * 4 + h)) if False else None
    for b in range(4):
        for h in range(2):
            d = 32 + b * 2 + h
            a("v_mul_f32 v%d, v%d, v%d" % (d, 48 + 2 * h, ACC + b * 4 + h))
    for s in range(1, 4):
        for b in range(4):
            for h in range(2):
                d = 32 + b * 2 + h
                a("v_fmac_f32 v%d, v%d, v%d" % (d, 48 + 4 * s + 2 * h, ACC + (s * 4 + b) * 4 + h))
    a("s_lshl_b32 s%d, s%d, 16" % (S_T0, S_G))
    a("s_lshl_b32 s%d, s%d, 13" % (S_T0 + 1, S_WAVE))
    a("s_add_u32 s%d, s%d, s%d" % (S_T0, S_T0, S_T0 + 1))
    a("s_lshl_b32 s%d, s%d, 6" % (S_T0 + 1, S_C))
    a("s_add_u32 s%d, s%d, s%d" % (S_T0, S_T0, S_T0 + 1))
    a("s_add_u32 s%d, s%d, 0x%x" % (S_T0, S_T0, P[L]))
    a("s_add_u32 s%d, s%d, 4096" % (S_T0 + 1, S_T0))
    a("s_add_u32 s%d, s%d, 32768" % (S_T0 + 2, S_T0))
    a("s_add_u32 s%d, s%d, 36864" % (S_T0 + 3, S_T0))
    set_exec_lt(16)
    for h in range(2):
        for b in range(4):
            a("buffer_store_dword v%d, v%d, %s, s%d offen offset:%d sc1" % (32 + b * 2 + h, V_L4, sr(SRD_WS, 4), S_T0 + 2 * h + b // 2, (b % 2) * 2048))
    skip = a.new("Lskipml")
    a("s_cmp_lg_u32 s%d, 0" % S_WAVE)
    a("s_cbranch_scc1 %s" % skip)
    set_exec_lt(1)
    a("s_lshl_b32 s%d, s%d, 9" % (S_T0, S_G))
    a("s_lshl_b32 s%d, s%d, 3" % (S_T0 + 1, S_C))
    a("s_add_u32 s%d, s%d, s%d" % (S_T0, S_T0, S_T0 + 1))
    a("s_add_u32 s%d, s%d, 0x%x" % (S_T0, S_T0, ML[L]))
    a("buffer_store_dwordx2 v[16:17], v%d, %s, s%d offen sc1" % (V_Z, sr(SRD_WS, 4), S_T0))
    a("buffer_store_dwordx2 v[18:19], v%d, %s, s%d offen offset:256 sc1" % (V_Z, sr(SRD_WS, 4), S_T0))
    a.lab(skip)
    exec_all()
    stamp(6 + 8 * L)
    a("s_barrier")
    if L == 0:
        for _ in range(5):
            a("s_barrier")
stamp_flush()
a("s_endpgm")

a.lab("L_G")
V_TS = 63
if DLY["prio"]:
    a("s_setprio %d" % DLY["prio"])
stamp_init()
stamp(0)
BF = 64
WO = 128
W2 = 144
WOR = 160
W2R = 176
AF = 192
XP = 16
YP = 20
FT = 24
TT = 32
DD = 40
V_MF, V_MB = 2, 3
V_L16 = 4
V_AR = 5
V_TR = 6
V_PAIR = 7
V_ZERO = 8
V_T = 9
V_XRES0, V_XRES1, V_B20, V_B21 = 10, 11, 12, 13
V_B1 = 14
V_L32 = 15
S_J = 77
a("s_sub_u32 s%d, s%d, 4" % (S_J, S_WAVE))
a("v_cmp_gt_u32 vcc, 56, v1")
a("v_mov_b32 v%d, 0" % V_ZERO)
a("v_lshlrev_b32 v%d, 4, v1" % V_L16)
a("v_cndmask_b32 v%d, 0, 1.0, vcc" % V_MF)
a("v_cndmask_b32 v%d, 0, -1, vcc" % V_MB)
a("v_lshrrev_b32 v%d, 4, v1" % V_T)
a("v_lshlrev_b32 v%d, 4, v%d" % (V_AR, V_T))
a("v_and_b32 v32, 15, v1")
a("v_lshrrev_b32 v33, 2, v32")
a("v_lshl_add_u32 v33, v%d, 3, v33" % V_T)
a("v_lshlrev_b32 v33, 5, v33")
a("v_and_b32 v34, 3, v32")
a("v_lshl_add_u32 v%d, v34, 3, v33" % V_TR)
a("v_lshrrev_b32 v%d, 1, v1" % V_PAIR)
a("v_lshlrev_b32 v%d, 2, v%d" % (V_PAIR, V_PAIR))
a("v_lshlrev_b32 v%d, 5, v1" % V_L32)
for i in range(4):
    a("v_mov_b32 v%d, 0" % (XP + i))


def load_w16(srd_lo, base_ptr, rowstride, col0_sgpr, lds_base):
    a("s_lshl_b32 s%d, s%d, 1" % (S_T0, col0_sgpr))
    srd(srd_lo, base_ptr, 448 * rowstride, S_T0)
    a("s_sub_u32 s%d, s%d, s%d" % (srd_lo + 2, srd_lo + 2, S_T0))
    a("v_lshrrev_b32 v32, 1, v1")
    a("s_mov_b32 s%d, %d" % (S_T0 + 1, rowstride))
    a("v_mul_lo_u32 v32, v32, s%d" % (S_T0 + 1))
    a("v_and_b32 v33, 1, v1")
    a("v_lshl_add_u32 v32, v33, 4, v32")
    for i in range(14):
        a("s_mov_b32 s%d, %d" % (S_T0 + 2 + i, i * 32 * rowstride))
    for i in range(14):
        a("buffer_load_dwordx4 %s, v32, %s, s%d offen%s" % (vr(BF + 4 * i, 4), sr(srd_lo, 4), S_T0 + 2 + i, " nt" if DLY["wnt"] else ""))


def stage_w16(lds_base, extra_outstanding=0):
    for i in range(14):
        a("s_waitcnt vmcnt(%d)" % (13 - i + extra_outstanding))
        a("ds_write_b128 v%d, %s offset:%d" % (V_L16, vr(BF + 4 * i, 4), lds_base + 1024 * i))
    a("s_waitcnt lgkmcnt(0)")
    for s in range(14):
        for hf in range(2):
            a("ds_read_b64_tr_b16 %s, v%d offset:%d" % (vr(BF + 4 * s + 2 * hf, 2), V_TR, lds_base + s * 1024 + hf * 128))
    a("s_waitcnt lgkmcnt(0)")


RAW = 128
PW = 192


def load_rows16(srd_lo, base_ptr, total_bytes, row0_sgpr):
    a("s_mul_i32 s%d, s%d, 896" % (S_T0, row0_sgpr))
    srd(srd_lo, base_ptr, 16 * 896, S_T0)
    for i in range(4):
        a("s_mov_b32 s%d, %d" % (S_T0 + 1 + i, i * 4 * 896))
    set_exec_lt(56)
    for r in range(16):
        a("buffer_load_dwordx4 %s, v%d, %s, s%d offen offset:%d nt" % (vr(RAW + 4 * r, 4), V_L16, sr(srd_lo, 4), S_T0 + 1 + r // 4, (r % 4) * 896))
    exec_all()


def perm_rows16():
    a("s_waitcnt vmcnt(0)")
    for i in range(8):
        for d in range(4):
            lo = RAW + 4 * (2 * i) + d
            hi = RAW + 4 * (2 * i + 1) + d
            a("v_perm_b32 v%d, v%d, v%d, s%d" % (PW + i * 8 + 2 * d, hi, lo, S_SEL0))
            a("v_perm_b32 v%d, v%d, v%d, s%d" % (PW + i * 8 + 2 * d + 1, hi, lo, S_SEL1))


S_PAIR = 60


def part_gemv(acc):
    for i in range(8):
        for col in range(8):
            if i == 0:
                a("v_dot2_f32_bf16 v%d, v%d, s%d, 0" % (acc + col, PW + col, S_PAIR))
            else:
                a("v_dot2_f32_bf16 v%d, v%d, s%d, v%d" % (acc + col, PW + i * 8 + col, S_PAIR + i, acc + col))
    a("s_nop 2")


def store_pairs16(vsrc, ws_off_sgpr, vt):
    a("s_nop 1")
    a("v_mov_b32_dpp v%d, v%d quad_perm:[1,0,3,2] row_mask:0xf bank_mask:0xf" % (vt, vsrc))
    a("s_nop 0")
    a("v_cvt_pk_bf16_f32 v%d, v%d, v%d" % (vt, vsrc, vt))
    a("s_mov_b32 exec_lo, 0x5555")
    a("s_mov_b32 exec_hi, 0")
    a("buffer_store_dword v%d, v%d, %s, s%d offen sc1" % (vt, V_PAIR, sr(SRD_WS, 4), ws_off_sgpr))
    exec_all()


def qproj(L):
    layernorm(XP, YP, FT, TT, V_MF, V_MB)
    gemv16(YP, YL, V_L16, V_AR, AF, BF, DD)
    a("s_lshl_b32 s%d, s%d, 10" % (S_T0, S_G))
    a("s_lshl_b32 s%d, s%d, 5" % (S_T0 + 1, S_C))
    a("s_add_u32 s%d, s%d, s%d" % (S_T0, S_T0, S_T0 + 1))
    if L == 0:
        a("s_lshl_b32 s%d, s%d, 1" % (S_T0, S_T0))
        a("s_nop 1")
        a("v_mov_b32_dpp v%d, v%d quad_perm:[1,0,3,2] row_mask:0xf bank_mask:0xf" % (TT, DD))
        a("v_lshlrev_b32 v%d, 1, v%d" % (TT + 2, V_PAIR))
        a("v_cvt_pk_bf16_f32 v%d, v%d, v%d" % (TT, DD, TT))
        a("v_mov_b32 v%d, s%d" % (TT + 1, S_TAG))
        a("s_mov_b32 exec_lo, 0x5555")
        a("s_mov_b32 exec_hi, 0")
        a("buffer_store_dwordx2 v[%d:%d], v%d, %s, s%d offen sc1" % (TT, TT + 1, TT + 2, sr(SRD_WS, 4), S_T0))
        exec_all()
    else:
        a("s_add_u32 s%d, s%d, 0x%x" % (S_T0, S_T0, Q[L]))
        store_pairs16(DD, S_T0, TT)


V_TAG = 62


def load_tag_issue():
    a("s_mov_b32 s%d, 0x%x" % (S_T0, EPOCH))
    a("buffer_load_dword v%d, v%d, %s, s%d offen sc1" % (V_TAG, V_ZERO, sr(SRD_WS, 4), S_T0))


def load_tag_finish():
    a("s_waitcnt vmcnt(0)")
    a("v_readfirstlane_b32 s%d, v%d" % (S_TAG, V_TAG))
    a("s_add_u32 s%d, s%d, 0x9e3779b9" % (S_TAG, S_TAG))


def gather_q(L, polled):
    if L == 1:
        a("s_lshl_b32 s%d, s%d, 10" % (S_T0 + 8, S_G))
        a("s_add_u32 s%d, s%d, 0x%x" % (S_T0 + 8, S_T0 + 8, Q[L]))
        poll([(FT, 4, V_L16, "s%d" % (S_T0 + 8), 0)], TT, DLY["q"])
    else:
        a("s_lshl_b32 s%d, s%d, 11" % (S_T0 + 8, S_G))
        a("v_lshlrev_b32 v%d, 5, v1" % (TT + 1))
        a("s_mov_b32 s%d, 0" % S_CNT)
        a("buffer_load_dwordx4 v[44:47], v%d, %s, s%d offen sc1" % (TT + 1, sr(SRD_WS, 4), S_T0 + 8))
        a("buffer_load_dwordx4 v[48:51], v%d, %s, s%d offen offset:16 sc1" % (TT + 1, sr(SRD_WS, 4), S_T0 + 8))
        a("s_waitcnt vmcnt(0)")
        a("s_branch L_q0chk2")
        a.lab("L_q0poll")
        a("buffer_load_dwordx4 v[44:47], v%d, %s, s%d offen sc1" % (TT + 1, sr(SRD_WS, 4), S_T0 + 8))
        a("buffer_load_dwordx4 v[48:51], v%d, %s, s%d offen offset:16 sc1" % (TT + 1, sr(SRD_WS, 4), S_T0 + 8))
        a("s_waitcnt vmcnt(0)")
        a.lab("L_q0chk2")
        a("v_xor_b32 v45, s%d, v45" % S_TAG)
        a("v_xor_b32 v47, s%d, v47" % S_TAG)
        a("v_xor_b32 v49, s%d, v49" % S_TAG)
        a("v_xor_b32 v51, s%d, v51" % S_TAG)
        a("v_or3_b32 v45, v45, v47, v49")
        a("v_or_b32 v45, v45, v51")
        a("v_cmp_ne_u32 vcc, 0, v45")
        a("s_add_u32 s%d, s%d, 1" % (S_CNT, S_CNT))
        a("s_cbranch_vccz L_q0done")
        a("s_sleep %d" % DLY["fr"])
        a("s_cmp_lt_u32 s%d, 0x%x" % (S_CNT, POLL_LIMIT))
        a("s_cbranch_scc1 L_q0poll")
        a.lab("L_q0done")
        if DIAG:
            a("v_writelane_b32 v%d, s%d, 46" % (V_TS, S_CNT))
        a("v_mov_b32 v%d, v44" % FT)
        a("v_mov_b32 v%d, v46" % (FT + 1))
        a("v_mov_b32 v%d, v48" % (FT + 2))
        a("v_mov_b32 v%d, v50" % (FT + 3))
    a("ds_write_b128 v%d, %s offset:%d" % (V_L16, vr(FT, 4), QL))
    a("s_waitcnt lgkmcnt(0)")


a("s_cmp_eq_u32 s%d, 0" % S_J)
a("s_cbranch_scc1 L_G0")
a("s_cmp_eq_u32 s%d, 1" % S_J)
a("s_cbranch_scc1 L_G1")
a("s_cmp_eq_u32 s%d, 2" % S_J)
a("s_cbranch_scc1 L_G2")
a("s_branch L_G3")


a.lab("L_G0")
NPOLL = 0
srd(SRD_B, S_X, 896)
a("buffer_load_dwordx4 %s, v%d, %s, 0 offen" % (vr(XP, 4), V_L16, sr(SRD_B, 4)))
a("s_mov_b32 s%d, 0x%x" % (S_T0, EPOCH))
a("buffer_load_dword v%d, v%d, %s, s%d offen sc1" % (V_B1, V_ZERO, sr(SRD_WS, 4), S_T0))
a("s_lshl_b32 s%d, s%d, 9" % (S_T0 + 20, S_G))
a("s_lshl_b32 s%d, s%d, 4" % (S_T0 + 21, S_C))
a("s_add_u32 s%d, s%d, s%d" % (S_T0 + 20, S_T0 + 20, S_T0 + 21))
load_w16(SRD_A, S_WQ, 8192, S_T0 + 20, WQS)
if DLY["b0late"]:
    a("s_waitcnt vmcnt(%d)" % (14 - DLY["b0late"]))
a("s_barrier")
stage_w16(WQS, 0)
a("v_readfirstlane_b32 s%d, v%d" % (S_TAG, V_B1))
a("s_add_u32 s%d, s%d, 0x9e3779b9" % (S_TAG, S_TAG))
stamp(1)
qproj(0)
stamp(2)
a("s_barrier")
a("v_lshlrev_b32 v%d, 5, v1" % TT)
a("s_mov_b32 s%d, 0" % S_CNT)
a("s_mov_b32 s%d, 0x%x" % (S_T0 + 1, DONE))
a.lab("L_flagpoll")
a("buffer_load_dwordx4 v[44:47], v%d, %s, s%d offen sc1" % (TT, sr(SRD_WS, 4), S_T0 + 1))
a("buffer_load_dwordx4 v[48:51], v%d, %s, s%d offen offset:16 sc1" % (TT, sr(SRD_WS, 4), S_T0 + 1))
a("s_waitcnt vmcnt(0)")
for r in range(44, 52):
    a("v_xor_b32 v%d, s%d, v%d" % (r, S_TAG, r))
a("v_or3_b32 v45, v44, v45, v46")
a("v_or3_b32 v47, v47, v48, v49")
a("v_or3_b32 v45, v45, v50, v51")
a("v_or_b32 v45, v45, v47")
a("v_cmp_ne_u32 vcc, 0, v45")
a("s_add_u32 s%d, s%d, 1" % (S_CNT, S_CNT))
a("s_cbranch_vccz L_flagdone")
a("s_sleep %d" % DLY["fr"])
a("s_cmp_lt_u32 s%d, 0x%x" % (S_CNT, POLL_LIMIT))
a("s_cbranch_scc1 L_flagpoll")
a.lab("L_flagdone")
if DIAG:
    a("v_writelane_b32 v%d, s%d, 47" % (V_TS, S_CNT))
stamp(3)
for _ in range(6):
    a("s_barrier")
a("s_mov_b32 s%d, 0x%x" % (S_T0 + 8, X2))
set_exec_lt(56)
poll([(XP, 4, V_L16, "s%d" % (S_T0 + 8), 0)], TT, DLY["x2"], first_sleep=True)
exec_all()
stamp(4)
qproj(1)
stamp(5)
a("s_barrier")
stamp_flush()
a("s_endpgm")

a.lab("L_G1")
NPOLL = 0
a("s_barrier")
a("s_setprio 0")
for _ in range(DLY["wdly"] // 64):
    a("s_sleep 64")
a("s_sleep %d" % (DLY["wdly"] % 64))
a("s_mul_i32 s%d, s%d, 224" % (S_T0 + 20, S_G))
a("s_lshl_b32 s%d, s%d, 4" % (S_T0 + 21, S_CP))
a("s_add_u32 s%d, s%d, s%d" % (S_T0 + 20, S_T0 + 20, S_T0 + 21))
srd(SRD_B, S_B1, 3584)
a("v_lshlrev_b32 v%d, 1, v1" % TT)
a("s_lshl_b32 s%d, s%d, 1" % (S_T0 + 22, S_T0 + 20))
a("buffer_load_ushort v%d, v%d, %s, s%d offen" % (V_B1, TT, sr(SRD_B, 4), S_T0 + 22))
skipw = a.new("Lskipw")
a("s_cmp_ge_u32 s%d, 14" % S_C)
a("s_cbranch_scc1 %s" % skipw)
load_w16(SRD_A, S_W1, 3584, S_T0 + 20, W1S)
load_rows16(SRD_C, S_W2, 1792 * 896, S_T0 + 20)
a.lab(skipw)
a("s_setprio %d" % DLY["prio"])
a("s_barrier")
a("s_barrier")
a("s_barrier")
a("s_barrier")
stage_w16(W1S, 16)
perm_rows16()
a("v_lshlrev_b32 v%d, 16, v%d" % (V_B1, V_B1))
a("v_lshlrev_b32 v%d, 12, v1" % V_L32)
a("s_mul_i32 s%d, s%d, 14" % (S_T0 + 23, S_G))
a("s_add_u32 s%d, s%d, s%d" % (S_T0 + 23, S_T0 + 23, S_CP))
a("s_lshl_b32 s%d, s%d, 4" % (S_T0 + 23, S_T0 + 23))
AF1 = RAW
for L in range(2):
    if L == 1:
        a("s_barrier")
        a("s_barrier")
    for _ in range(3 if L == 1 else 1):
        a("s_barrier")
    a("s_mov_b32 s%d, 0x%x" % (S_T0 + 8, X1[L]))
    set_exec_lt(56)
    poll([(XP, 4, V_L16, "s%d" % (S_T0 + 8), 0)], TT, DLY["x1"], first_sleep=True)
    exec_all()
    stamp(1 + 8 * L)
    layernorm(XP, YP, FT, TT, V_MF, V_MB)
    layernorm(YP, XP, FT, TT, V_MF, V_MB)
    gemv16(XP, YL2, V_L16, V_AR, AF1, BF, DD)
    a("v_cvt_pk_bf16_f32 v%d, v%d, v%d" % (TT, DD, DD))
    a("v_and_b32 v%d, 0xffff0000, v%d" % (TT, TT))
    a("v_add_f32 v%d, v%d, v%d" % (TT, TT, V_B1))
    a("v_cvt_pk_bf16_f32 v%d, v%d, v%d" % (TT, TT, TT))
    a("v_and_b32 v%d, 0xffff0000, v%d" % (TT, TT))
    a("v_mul_f32 v%d, v%d, v%d" % (TT + 1, TT, TT))
    a("v_mov_b32 v%d, 0x3f4c422a" % (TT + 2))
    a("v_fmac_f32 v%d, 0x3d122279, v%d" % (TT + 2, TT + 1))
    a("v_mul_f32 v%d, v%d, v%d" % (TT + 2, TT + 2, TT))
    a("v_mul_f32 v%d, 0xc038aa3b, v%d" % (TT + 2, TT + 2))
    a("v_exp_f32 v%d, v%d" % (TT + 2, TT + 2))
    a("s_nop 0")
    a("v_add_f32 v%d, 1.0, v%d" % (TT + 2, TT + 2))
    a("v_rcp_f32 v%d, v%d" % (TT + 2, TT + 2))
    a("s_nop 0")
    a("v_mul_f32 v%d, v%d, v%d" % (TT + 3, TT, TT + 2))
    a("s_nop 1")
    a("v_mov_b32_dpp v%d, v%d quad_perm:[1,0,3,2] row_mask:0xf bank_mask:0xf" % (TT + 4, TT + 3))
    a("s_nop 0")
    a("v_cvt_pk_bf16_f32 v%d, v%d, v%d" % (TT + 4, TT + 3, TT + 4))
    a("s_nop 0")
    for i in range(8):
        a("v_readlane_b32 s%d, v%d, %d" % (S_PAIR + i, TT + 4, 2 * i))
    a("s_nop 1")
    part_gemv(44)
    a("s_add_u32 s%d, s%d, 0x%x" % (S_T0, S_T0 + 23, R2[L]))
    skip = a.new("Lskipr2")
    a("s_cmp_ge_u32 s%d, 14" % S_C)
    a("s_cbranch_scc1 %s" % skip)
    set_exec_lt(56)
    a("buffer_store_dwordx4 v[44:47], v%d, %s, s%d offen sc1" % (V_L32, sr(SRD_WS, 4), S_T0))
    a("buffer_store_dwordx4 v[48:51], v%d, %s, s%d offen offset:2048 sc1" % (V_L32, sr(SRD_WS, 4), S_T0))
    exec_all()
    a.lab(skip)
    stamp(2 + 8 * L)
    a("s_barrier")
    if L == 0:
        a("s_barrier")
        a("s_barrier")
stamp_flush()
a("s_endpgm")

a.lab("L_G2")
NPOLL = 0
for i in range(4):
    a("v_mov_b32 v%d, 0" % (FT + i))
set_exec_lt(32)
a("ds_write_b128 v%d, %s offset:%d" % (V_L16, vr(FT, 4), QL + 1024))
set_exec_lt(16)
a("ds_write_b128 v%d, %s offset:%d" % (V_L16, vr(FT, 4), PL + 512))
exec_all()
load_tag_issue()
a("s_barrier")
load_tag_finish()
for _ in range(DLY["f"] // 64):
    a("s_sleep 64")
a("s_sleep %d" % (DLY["f"] % 64))
gather_q(0, False)
stamp(2)
WO_LOADS = True
a("v_lshlrev_b32 v%d, 13, v1" % V_L32)
a("v_add_u32 v%d, 4096, v%d" % (V_B1, V_L32))
a("s_lshl_b32 s%d, s2, 4" % (S_T0 + 23))
for L in range(2):
    a("s_barrier")
    if L == 0:
        a("s_setprio 0")
        a("s_lshl_b32 s%d, s%d, 9" % (S_T0 + 20, S_G))
        a("s_lshl_b32 s%d, s%d, 4" % (S_T0 + 21, S_C))
        a("s_add_u32 s%d, s%d, s%d" % (S_T0 + 20, S_T0 + 20, S_T0 + 21))
        load_rows16(SRD_C, S_WO, 4096 * 896, S_T0 + 20)
        a("s_setprio %d" % DLY["prio"])
    a("s_barrier")
    if L == 0:
        perm_rows16()
    a("s_barrier")
    a("v_and_b32 v%d, 31, v1" % TT)
    a("v_lshrrev_b32 v%d, 5, v1" % (TT + 1))
    a("v_lshlrev_b32 v%d, 6, v%d" % (TT + 2, TT))
    a("v_lshl_add_u32 v%d, v%d, 5, v%d" % (TT + 2, TT + 1, TT + 2))
    a("v_lshlrev_b32 v%d, 3, v%d" % (TT + 3, TT))
    a("s_lshl_b32 s%d, s%d, 16" % (S_T0 + 8, S_G))
    a("s_lshl_b32 s%d, s%d, 11" % (S_T0 + 9, S_C))
    a("s_add_u32 s%d, s%d, s%d" % (S_T0 + 8, S_T0 + 8, S_T0 + 9))
    a("s_add_u32 s%d, s%d, 0x%x" % (S_T0 + 8, S_T0 + 8, P[L]))
    a("s_lshl_b32 s%d, s%d, 9" % (S_T0 + 9, S_G))
    a("s_lshr_b32 s%d, s%d, 4" % (S_T0 + 10, S_C))
    a("s_lshl_b32 s%d, s%d, 8" % (S_T0 + 10, S_T0 + 10))
    a("s_add_u32 s%d, s%d, s%d" % (S_T0 + 9, S_T0 + 9, S_T0 + 10))
    a("s_add_u32 s%d, s%d, 0x%x" % (S_T0 + 9, S_T0 + 9, ML[L]))
    poll([(44, 4, TT + 2, "s%d" % (S_T0 + 8), 0), (48, 4, TT + 2, "s%d" % (S_T0 + 8), 16), (52, 2, TT + 3, "s%d" % (S_T0 + 9), 0)], TT + 4, DLY["p"] if L else DLY["p0"], retry=(None if L else DLY["r0"]))
    stamp(3 + 8 * L)
    a("v_mov_b32 v54, v52")
    a("s_nop 1")
    dpp_reduce64("v_max_f32", [54])
    a("v_readlane_b32 s%d, v54, 63" % S_T0)
    a("s_nop 1")
    a("v_subrev_f32 v54, s%d, v52" % S_T0)
    a("v_mul_f32 v54, 0x%x, v54" % LOG2E)
    a("v_exp_f32 v54, v54")
    a("s_nop 0")
    for i in range(8):
        a("v_mul_f32 v%d, v%d, v54" % (44 + i, 44 + i))
    a("v_mul_f32 v53, v53, v54")
    a("s_nop 1")
    dpp_reduce32("v_add_f32", list(range(44, 52)) + [53])
    a("s_nop 0")
    a("v_rcp_f32 v53, v53")
    a("s_nop 0")
    for i in range(8):
        a("v_mul_f32 v%d, v%d, v53" % (44 + i, 44 + i))
    for i in range(4):
        a("v_cvt_pk_bf16_f32 v%d, v%d, v%d" % (56 + i, 44 + 2 * i, 45 + 2 * i))
    a("s_nop 0")
    for i in range(4):
        a("v_readlane_b32 s%d, v%d, 31" % (S_PAIR + i, 56 + i))
        a("v_readlane_b32 s%d, v%d, 63" % (S_PAIR + 4 + i, 56 + i))
    a("s_nop 1")
    part_gemv(44)
    a("s_add_u32 s%d, s%d, 0x%x" % (S_T0, S_T0 + 23, R1[L]))
    set_exec_lt(56)
    a("buffer_store_dwordx4 v[44:47], v%d, %s, s%d offen sc1" % (V_L32, sr(SRD_WS, 4), S_T0))
    a("buffer_store_dwordx4 v[48:51], v%d, %s, s%d offen sc1" % (V_B1, sr(SRD_WS, 4), S_T0))
    exec_all()
    stamp(4 + 8 * L)
    a("s_barrier")
    if L == 0:
        for _ in range(4):
            a("s_barrier")
        gather_q(1, True)
        stamp(5)
stamp_flush()
a("s_endpgm")

a.lab("L_G3")
NPOLL = 0
a("s_mul_i32 s%d, s2, %d" % (S_T0, CLR_PER_WG))
a("s_add_u32 s%d, s%d, 0x%x" % (S_T0, S_T0, CLR_BASE))
a("s_add_u32 s%d, s%d, 4096" % (S_T0 + 1, S_T0))
a("s_add_u32 s%d, s%d, 8192" % (S_T0 + 2, S_T0))
for i in range(4):
    a("v_mov_b32 v%d, -1" % (FT + i))
for i in range(10):
    a("buffer_store_dwordx4 %s, v%d, %s, s%d offen offset:%d sc1" % (vr(FT, 4), V_L16, sr(SRD_WS, 4), S_T0 + i // 4, (i % 4) * 1024))
load_tag_issue()
a("s_barrier")
load_tag_finish()
stamp(5)
a("s_lshl_b32 s%d, s2, 3" % S_T0)
a("s_add_u32 s%d, s%d, 0x%x" % (S_T0, S_T0, DONE))
a("v_mov_b32 v%d, s%d" % (TT, S_TAG))
a("v_mov_b32 v%d, s%d" % (TT + 1, S_TAG))
set_exec_lt(1)
a("buffer_store_dwordx2 v[%d:%d], v%d, %s, s%d offen sc1" % (TT, TT + 1, V_ZERO, sr(SRD_WS, 4), S_T0))
exec_all()
a("s_barrier")
a("s_barrier")
S_CB = 87
a("s_mul_i32 s%d, s%d, 14" % (S_CB, S_G))
a("s_add_u32 s%d, s%d, s%d" % (S_CB, S_CB, S_CP))
a("s_lshl_b32 s%d, s%d, 3" % (S_T0 + 23, S_CB))
srd(SRD_A, S_X, 896)
srd(SRD_B, S_B2, 896)
a("buffer_load_dwordx2 v[%d:%d], v%d, %s, s%d offen" % (TT, TT + 1, V_ZERO, sr(SRD_A, 4), S_T0 + 23))
a("buffer_load_dwordx2 v[%d:%d], v%d, %s, s%d offen" % (TT + 2, TT + 3, V_ZERO, sr(SRD_B, 4), S_T0 + 23))
a("s_waitcnt vmcnt(0)")
XR = 16
B2R = 20
for i in range(2):
    a("v_lshlrev_b32 v%d, 16, v%d" % (XR + 2 * i, TT + i))
    a("v_and_b32 v%d, 0xffff0000, v%d" % (XR + 2 * i + 1, TT + i))
    a("v_lshlrev_b32 v%d, 16, v%d" % (B2R + 2 * i, TT + 2 + i))
    a("v_and_b32 v%d, 0xffff0000, v%d" % (B2R + 2 * i + 1, TT + 2 + i))
srd(SRD_A, S_OUT, 896)


def rnd4(r, t):
    a("v_cvt_pk_bf16_f32 v%d, v%d, v%d" % (t, r, r + 1))
    a("v_cvt_pk_bf16_f32 v%d, v%d, v%d" % (t + 1, r + 2, r + 3))
    a("v_lshlrev_b32 v%d, 16, v%d" % (r, t))
    a("v_and_b32 v%d, 0xffff0000, v%d" % (r + 1, t))
    a("v_lshlrev_b32 v%d, 16, v%d" % (r + 2, t + 1))
    a("v_and_b32 v%d, 0xffff0000, v%d" % (r + 3, t + 1))


for L in range(2):
    if L == 1:
        a("s_barrier")
        a("s_barrier")
    a("s_barrier")
    a("s_barrier")
    a("s_lshl_b32 s%d, s%d, 12" % (S_T0 + 8, S_CB))
    a("s_add_u32 s%d, s%d, 0x%x" % (S_T0 + 8, S_T0 + 8, R1[L]))
    poll([(44 + 4 * i, 4, V_L16, "s%d" % (S_T0 + 8), 1024 * i) for i in range(4)], TT, DLY["r1"], retry=(None if L else DLY["r0"]))
    stamp(1 + 8 * L)
    for i in range(4):
        a("v_add_f32 v%d, v%d, v%d" % (44 + i, 44 + i, 48 + i))
        a("v_add_f32 v%d, v%d, v%d" % (52 + i, 52 + i, 56 + i))
    for i in range(4):
        a("v_add_f32 v%d, v%d, v%d" % (44 + i, 44 + i, 52 + i))
    a("s_nop 1")
    dpp_reduce64("v_add_f32", [44, 45, 46, 47])
    rnd4(44, TT)
    for i in range(4):
        a("v_add_f32 v%d, v%d, v%d" % (XR + i, XR + i, 44 + i))
    rnd4(XR, TT)
    a("s_add_u32 s%d, s%d, 0x%x" % (S_T0, S_T0 + 23, X1[L]))
    skip = a.new("Lskipx1")
    a("s_cmp_ge_u32 s%d, 14" % S_C)
    a("s_cbranch_scc1 %s" % skip)
    a("s_mov_b32 exec_lo, 0")
    a("s_mov_b32 exec_hi, 0x80000000")
    a("buffer_store_dwordx2 v[%d:%d], v%d, %s, s%d offen sc1" % (TT, TT + 1, V_ZERO, sr(SRD_WS, 4), S_T0))
    exec_all()
    a.lab(skip)
    stamp(2 + 8 * L)
    a("s_barrier")
    a("s_barrier")
    a("s_lshl_b32 s%d, s%d, 11" % (S_T0 + 8, S_CB))
    a("s_add_u32 s%d, s%d, 0x%x" % (S_T0 + 8, S_T0 + 8, R2[L]))
    a("v_min_u32 v%d, 47, v1" % (TT + 2))
    a("v_lshlrev_b32 v%d, 4, v%d" % (TT + 2, TT + 2))
    poll([(44, 4, V_L16, "s%d" % (S_T0 + 8), 0), (48, 4, TT + 2, "s%d" % (S_T0 + 8), 1024)], TT, DLY["r2"], first_sleep=True)
    stamp(3 + 8 * L)
    a("v_cmp_gt_u32 vcc, 48, v1")
    a("s_nop 1")
    for i in range(4):
        a("v_cndmask_b32 v%d, 0, v%d, vcc" % (48 + i, 48 + i))
    for i in range(4):
        a("v_add_f32 v%d, v%d, v%d" % (44 + i, 44 + i, 48 + i))
    a("s_nop 1")
    dpp_reduce64("v_add_f32", [44, 45, 46, 47])
    rnd4(44, TT)
    for i in range(4):
        a("v_add_f32 v%d, v%d, v%d" % (44 + i, 44 + i, B2R + i))
    rnd4(44, TT)
    for i in range(4):
        a("v_add_f32 v%d, v%d, v%d" % (XR + i, XR + i, 44 + i))
    rnd4(XR, TT)
    skip = a.new("Lskipx2")
    a("s_cmp_ge_u32 s%d, 14" % S_C)
    a("s_cbranch_scc1 %s" % skip)
    a("s_mov_b32 exec_lo, 0")
    a("s_mov_b32 exec_hi, 0x80000000")
    if L == 0:
        a("s_add_u32 s%d, s%d, 0x%x" % (S_T0, S_T0 + 23, X2))
        a("buffer_store_dwordx2 v[%d:%d], v%d, %s, s%d offen sc1" % (TT, TT + 1, V_ZERO, sr(SRD_WS, 4), S_T0))
    else:
        a("buffer_store_dwordx2 v[%d:%d], v%d, %s, s%d offen" % (TT, TT + 1, V_ZERO, sr(SRD_A, 4), S_T0 + 23))
    exec_all()
    a.lab(skip)
    stamp(4 + 8 * L)
    if L == 0:
        a("s_barrier")
        a("s_barrier")
skip = a.new("Lskipep")
a("s_cmp_lg_u32 s2, 0")
a("s_cbranch_scc1 %s" % skip)
a("s_mov_b32 s%d, 0x%x" % (S_T0, EPOCH))
a("v_mov_b32 v%d, s%d" % (TT, S_TAG))
set_exec_lt(1)
a("buffer_store_dword v%d, v%d, %s, s%d offen sc1" % (TT, V_ZERO, sr(SRD_WS, 4), S_T0))
exec_all()
a.lab(skip)
stamp_flush()
a.lab("L_end")
a("s_endpgm")

a.l.append('.section .rodata,"a"')
a.l.append(".p2align 6")
a.l.append(".amdhsa_kernel %s_kernel" % NAME)
a.l.append("  .amdhsa_next_free_vgpr 256")
a.l.append("  .amdhsa_next_free_sgpr 102")
a.l.append("  .amdhsa_accum_offset 256")
a.l.append("  .amdhsa_group_segment_fixed_size 0")
a.l.append("  .amdhsa_kernarg_size 104")
a.l.append("  .amdhsa_user_sgpr_count 2")
a.l.append("  .amdhsa_user_sgpr_kernarg_segment_ptr 1")
a.l.append("  .amdhsa_system_sgpr_workgroup_id_x 1")
a.l.append(".end_amdhsa_kernel")

out = sys.argv[1] if len(sys.argv) > 1 else "cdna_kernels/%s.s" % NAME
open(out, "w").write(a.text())
print("wrote", out, "lines", len(a.l), "lds", LDS_SIZE)
```

```python
import sys

NAME = "interleave_layers__sliding_block_cached__mixer_channel_mlp__decode"

Q0T = 0x0000
EPOCH = 0x4000
DONE = 0x5000
Q = [None, 0x6000]
ML = [0x8000, 0x9000]
X1 = [0xA000, 0xA400]
X2 = 0xA800
P = [0x10000, 0x90000]
R1 = [0x110000, 0x180000]
R2 = [0x1F0000, 0x228000]
CLR_BASE = 0x6000
CLR_PER_WG = 10240
WS_SIZE = CLR_BASE + 256 * CLR_PER_WG
TS_BASE = 0x300000

VROW = 544
QL = 0
PL = QL + 3 * 512
ST = PL + 3 * 256
WQS = ST + 64
W1S = WQS + 14336
YL = W1S + 14336
YL2 = YL + 1024
RED = YL2 + 1024
RED2 = RED + 64
VSTB = RED2 + 64
VST = 0
LDS_SIZE = VSTB + 128 * VROW

POLL_LIMIT = 1 << 22

import os
DIAG = int(os.environ.get("DIAG", "0"))
DBG = int(os.environ.get("DBG", "0"))
DBGN = [0]


def dbg_stamp():
    if not DBG:
        return
    a("s_memrealtime s[96:97]")
    a("s_memtime s[98:99]")
    a("s_waitcnt lgkmcnt(0)")
    a("v_writelane_b32 v61, s96, %d" % DBGN[0])
    a("v_writelane_b32 v61, s98, %d" % (DBGN[0] + 8))
    DBGN[0] += 1

DLY = dict(p=0, r1=0, x1=0, r2=0, x2=0, q=0, f=100, fr=16, r=4, win=16, b0late=0, wnt=1, w1late=1, p0=10, r0=4, vafter=1, wdly=2, n1=8, cdly=2, prio=3, n0=0)
for k in DLY:
    DLY[k] = int(os.environ.get("DLY_" + k, DLY[k]))


class A:
    def __init__(self):
        self.l = []
        self.n = 0

    def __call__(self, s):
        self.l.append("    " + s)

    def lab(self, s):
        self.l.append(s + ":")

    def new(self, p="L"):
        self.n += 1
        return "%s_%d" % (p, self.n)

    def text(self):
        return "\n".join(self.l) + "\n"


a = A()


def vr(lo, n):
    return "v[%d:%d]" % (lo, lo + n - 1) if n > 1 else "v%d" % lo


def sr(lo, n):
    return "s[%d:%d]" % (lo, lo + n - 1) if n > 1 else "s%d" % lo


S_X, S_K, S_V, S_WQ, S_WO, S_BX, S_W1, S_B1, S_W2, S_B2, S_OUT, S_DBG, S_WS = 4, 6, 8, 10, 12, 14, 16, 18, 20, 22, 24, 26, 28
S_WAVE, S_G, S_C = 30, 31, 3
SRD_WS = 32
SRD_A = 36
SRD_B = 40
SRD_C = 44
SRD_D = 48
S_T0 = 52
S_CNT = 76
S_SEL0, S_SEL1 = 78, 79
S_EXEC = 80
S_TS = 84
S_TSOFF = 86
S_TAG = 94

V_LANE = 1


def srd(dst, base, size, off_sgpr=None):
    if off_sgpr is None:
        a("s_mov_b32 s%d, s%d" % (dst, base))
        a("s_and_b32 s%d, s%d, 0xffff" % (dst + 1, base + 1))
    else:
        a("s_add_u32 s%d, s%d, s%d" % (dst, base, off_sgpr))
        a("s_addc_u32 s%d, s%d, 0" % (dst + 1, base + 1))
        a("s_and_b32 s%d, s%d, 0xffff" % (dst + 1, dst + 1))
    a("s_mov_b32 s%d, 0x%x" % (dst + 2, size))
    a("s_mov_b32 s%d, 0x00020000" % (dst + 3))


V_TS = 31


def stamp(idx):
    if not DIAG:
        return
    a("s_memrealtime %s" % sr(S_TS, 2))
    a("s_waitcnt lgkmcnt(0)")
    a("v_writelane_b32 v%d, s%d, %d" % (V_TS, S_TS, idx))


def stamp_init():
    if not DIAG:
        return
    a("v_mov_b32 v%d, 0x5a5a5a5a" % V_TS)


def stamp_flush():
    if not DIAG:
        return
    a("s_lshl_b32 s%d, s2, 11" % S_TSOFF)
    a("s_lshl_b32 s%d, s%d, 8" % (S_TS, S_WAVE))
    a("s_add_u32 s%d, s%d, s%d" % (S_TSOFF, S_TSOFF, S_TS))
    a("v_lshlrev_b32 v0, 2, v1")
    a("s_mov_b64 exec, -1")
    a("buffer_store_dword v%d, v0, %s, s%d offen" % (V_TS, sr(88, 4), S_TSOFF))


def set_exec_lt(n):
    if n >= 64:
        a("s_mov_b64 exec, -1")
    elif n == 32:
        a("s_mov_b32 exec_lo, -1")
        a("s_mov_b32 exec_hi, 0")
    elif n < 32:
        a("s_mov_b32 exec_lo, 0x%x" % ((1 << n) - 1))
        a("s_mov_b32 exec_hi, 0")
    else:
        a("s_mov_b32 exec_lo, -1")
        a("s_mov_b32 exec_hi, 0x%x" % ((1 << (n - 32)) - 1))


def exec_all():
    a("s_mov_b64 exec, -1")


NPOLL = 0


def poll(loads, vtmp, delay=0, first_sleep=False, retry=None):
    if delay:
        d = delay
        while d > 0:
            a("s_sleep %d" % min(d, 127))
            d -= min(d, 127)
    a("s_mov_b32 s%d, 0" % S_CNT)
    top = a.new("Lpoll")
    done = a.new("Lpolld")
    a.lab(top)
    regs = []
    for (d, n, vo, so, imm) in loads:
        op = {1: "buffer_load_dword", 2: "buffer_load_dwordx2", 4: "buffer_load_dwordx4"}[n]
        a("%s %s, v%d, %s, %s offen offset:%d sc1" % (op, vr(d, n), vo, sr(SRD_WS, 4), so, imm))
        regs += list(range(d, d + n))
    a("s_waitcnt vmcnt(0)")
    cur = None
    i = 0
    while i < len(regs):
        if cur is None:
            if len(regs) - i >= 3:
                a("v_max3_u32 v%d, v%d, v%d, v%d" % (vtmp, regs[i], regs[i + 1], regs[i + 2]))
                i += 3
            elif len(regs) - i == 2:
                a("v_max_u32 v%d, v%d, v%d" % (vtmp, regs[i], regs[i + 1]))
                i += 2
            else:
                a("v_mov_b32 v%d, v%d" % (vtmp, regs[i]))
                i += 1
            cur = vtmp
        else:
            if len(regs) - i >= 2:
                a("v_max3_u32 v%d, v%d, v%d, v%d" % (vtmp, vtmp, regs[i], regs[i + 1]))
                i += 2
            else:
                a("v_max_u32 v%d, v%d, v%d" % (vtmp, vtmp, regs[i]))
                i += 1
    a("v_cmp_eq_u32 vcc, -1, v%d" % vtmp)
    a("s_add_u32 s%d, s%d, 1" % (S_CNT, S_CNT))
    a("s_cbranch_vccz %s" % done)
    if retry is None:
        retry = DLY["r"]
    if retry:
        a("s_sleep %d" % retry)
    a("s_cmp_lt_u32 s%d, 0x%x" % (S_CNT, POLL_LIMIT))
    a("s_cbranch_scc1 %s" % top)
    a.lab(done)
    if DIAG:
        global NPOLL
        a("v_writelane_b32 v%d, s%d, %d" % (V_TS, S_CNT, 48 + NPOLL))
        NPOLL += 1


def dpp_reduce64(op, regs):
    steps = ["row_ror:8", "row_ror:4", "row_ror:2", "row_ror:1"]
    for st in steps:
        for r in regs:
            a("%s_dpp v%d, v%d, v%d %s row_mask:0xf bank_mask:0xf" % (op, r, r, r, st))
        if len(regs) < 3:
            a("s_nop %d" % (2 - len(regs)))
    for st, rm in (("row_bcast:15", "0xa"), ("row_bcast:31", "0xc")):
        for r in regs:
            a("%s_dpp v%d, v%d, v%d %s row_mask:%s bank_mask:0xf" % (op, r, r, r, st, rm))
        if len(regs) < 3:
            a("s_nop %d" % (2 - len(regs)))


def dpp_reduce_row(op, regs):
    for st in ["row_ror:8", "row_ror:4", "row_ror:2", "row_ror:1"]:
        for r in regs:
            a("%s_dpp v%d, v%d, v%d %s row_mask:0xf bank_mask:0xf" % (op, r, r, r, st))
        if len(regs) < 3:
            a("s_nop %d" % (2 - len(regs)))


def dpp_reduce32(op, regs):
    for st in ["row_ror:8", "row_ror:4", "row_ror:2", "row_ror:1"]:
        for r in regs:
            a("%s_dpp v%d, v%d, v%d %s row_mask:0xf bank_mask:0xf" % (op, r, r, r, st))
        if len(regs) < 3:
            a("s_nop %d" % (2 - len(regs)))
    for r in regs:
        a("%s_dpp v%d, v%d, v%d row_bcast:15 row_mask:0xa bank_mask:0xf" % (op, r, r, r))
    if len(regs) < 3:
        a("s_nop %d" % (2 - len(regs)))


LOG2E = 0x3fb8aa3b
INV448 = 0x3b124925
EPS = 0x3727c5ac


def layernorm(X, Y, F, T, vmaskf, vmaskb):
    for i in range(4):
        a("v_lshlrev_b32 v%d, 16, v%d" % (F + 2 * i, X + i))
        a("v_and_b32 v%d, 0xffff0000, v%d" % (F + 2 * i + 1, X + i))
    a("v_add_f32 v%d, v%d, v%d" % (T, F, F + 1))
    a("v_add_f32 v%d, v%d, v%d" % (T + 1, F + 2, F + 3))
    a("v_add_f32 v%d, v%d, v%d" % (T + 2, F + 4, F + 5))
    a("v_add_f32 v%d, v%d, v%d" % (T + 3, F + 6, F + 7))
    a("v_add_f32 v%d, v%d, v%d" % (T, T, T + 1))
    a("v_add_f32 v%d, v%d, v%d" % (T + 2, T + 2, T + 3))
    a("v_add_f32 v%d, v%d, v%d" % (T, T, T + 2))
    a("s_nop 1")
    dpp_reduce64("v_add_f32", [T])
    a("v_readlane_b32 s%d, v%d, 63" % (S_T0, T))
    a("s_nop 1")
    a("v_mov_b32 v%d, s%d" % (T + 1, S_T0))
    a("v_mul_f32 v%d, 0x%x, v%d" % (T + 1, INV448, T + 1))
    a("v_sub_f32 v%d, v%d, v%d" % (T + 2, F, T + 1))
    a("v_mul_f32 v%d, v%d, v%d" % (T, T + 2, T + 2))
    for i in range(1, 8):
        a("v_sub_f32 v%d, v%d, v%d" % (T + 2, F + i, T + 1))
        a("v_fmac_f32 v%d, v%d, v%d" % (T, T + 2, T + 2))
    a("v_mul_f32 v%d, v%d, v%d" % (T, T, vmaskf))
    a("s_nop 1")
    dpp_reduce64("v_add_f32", [T])
    a("v_readlane_b32 s%d, v%d, 63" % (S_T0, T))
    a("s_nop 1")
    a("v_mov_b32 v%d, s%d" % (T + 2, S_T0))
    a("v_mul_f32 v%d, 0x%x, v%d" % (T + 2, INV448, T + 2))
    a("v_cvt_pk_bf16_f32 v%d, v%d, v%d" % (T + 3, T + 1, T + 2))
    a("v_lshlrev_b32 v%d, 16, v%d" % (T + 1, T + 3))
    a("v_and_b32 v%d, 0xffff0000, v%d" % (T + 2, T + 3))
    a("v_add_f32 v%d, 0x%x, v%d" % (T + 2, EPS, T + 2))
    a("v_cvt_pk_bf16_f32 v%d, v%d, v%d" % (T + 2, T + 2, T + 2))
    a("v_and_b32 v%d, 0xffff0000, v%d" % (T + 2, T + 2))
    a("v_sqrt_f32 v%d, v%d" % (T + 2, T + 2))
    a("s_nop 0")
    a("v_cvt_pk_bf16_f32 v%d, v%d, v%d" % (T + 2, T + 2, T + 2))
    a("v_and_b32 v%d, 0xffff0000, v%d" % (T + 2, T + 2))
    a("v_rcp_f32 v%d, v%d" % (T + 2, T + 2))
    for i in range(4):
        a("v_sub_f32 v%d, v%d, v%d" % (F + 2 * i, F + 2 * i, T + 1))
        a("v_sub_f32 v%d, v%d, v%d" % (F + 2 * i + 1, F + 2 * i + 1, T + 1))
        a("v_cvt_pk_bf16_f32 v%d, v%d, v%d" % (T + 3, F + 2 * i, F + 2 * i + 1))
        a("v_lshlrev_b32 v%d, 16, v%d" % (T + 4, T + 3))
        a("v_and_b32 v%d, 0xffff0000, v%d" % (T + 5, T + 3))
        a("v_mul_f32 v%d, v%d, v%d" % (T + 4, T + 4, T + 2))
        a("v_mul_f32 v%d, v%d, v%d" % (T + 5, T + 5, T + 2))
        a("v_cvt_pk_bf16_f32 v%d, v%d, v%d" % (Y + i, T + 4, T + 5))
        a("v_and_b32 v%d, v%d, v%d" % (Y + i, Y + i, vmaskb))


def gemv16(Yp, ylds, vaddr_w, vaddr_r, AF, BF, D):
    a("ds_write_b128 v%d, %s offset:%d" % (vaddr_w, vr(Yp, 4), ylds))
    a("s_waitcnt lgkmcnt(0)")
    for s in range(14):
        a("ds_read_b128 %s, v%d offset:%d" % (vr(AF + 4 * s, 4), vaddr_r, ylds + 64 * s))
    for s in range(14):
        a("s_waitcnt lgkmcnt(%d)" % (13 - s))
        a("v_mfma_f32_16x16x32_bf16 %s, %s, %s, %s" % (vr(D, 4), vr(AF + 4 * s, 4), vr(BF + 4 * s, 4), "0" if s == 0 else vr(D, 4)))
    a("s_nop 7")
    a("s_nop 1")


a.l.append("; @launch grid=(256,1,1) block=(512,1,1) lds=%d" % LDS_SIZE)
a.l.append('.amdgcn_target "amdgcn-amd-amdhsa--gfx950"')
a.l.append(".text")
a.l.append(".globl %s_kernel" % NAME)
a.l.append(".p2align 8")
a.l.append(".type %s_kernel,@function" % NAME)
a.lab("%s_kernel" % NAME)
a("s_cmp_ge_u32 s2, 256")
a("s_cbranch_scc1 L_end")
a("s_load_dwordx16 s[4:19], s[0:1], 0")
a("s_load_dwordx8 s[20:27], s[0:1], 64")
a("s_load_dwordx2 s[28:29], s[0:1], 96")
a("v_and_b32 v1, 63, v0")
a("v_lshrrev_b32 v2, 6, v0")
a("s_and_b32 s%d, s2, 7" % S_G)
a("v_readfirstlane_b32 s%d, v2" % S_WAVE)
a("s_lshr_b32 s%d, s2, 3" % S_C)
S_CP = 92
a("s_mov_b32 s%d, s%d" % (S_CP, S_C))
a("s_cmp_ge_u32 s%d, 14" % S_CP)
a("s_cselect_b32 s93, 14, 0")
a("s_sub_u32 s%d, s%d, s93" % (S_CP, S_CP))
a("s_cmp_ge_u32 s%d, 14" % S_CP)
a("s_cselect_b32 s93, 14, 0")
a("s_sub_u32 s%d, s%d, s93" % (S_CP, S_CP))
a("s_mov_b32 s%d, 0x05040100" % S_SEL0)
a("s_mov_b32 s%d, 0x07060302" % S_SEL1)
a("s_waitcnt lgkmcnt(0)")
srd(SRD_WS, S_WS, WS_SIZE)
if DIAG:
    a("s_add_u32 s88, s%d, 0x%x" % (S_WS, TS_BASE))
    a("s_addc_u32 s89, s%d, 0" % (S_WS + 1))
    a("s_and_b32 s89, s89, 0xffff")
    a("s_mov_b32 s90, 0x80000")
    a("s_mov_b32 s91, 0x00020000")
a("s_cmp_ge_u32 s%d, 4" % S_WAVE)
a("s_cbranch_scc1 L_G")

KF = 64
VF = 128
QF = 192
ACC = 192
PF = 32
SC = 16
V_OK0, V_OK1, V_OV, V_VW, V_VR, V_QR, V_PR, V_PW, V_L4, V_Z = 2, 3, 4, 5, 6, 7, 8, 9, 10, 11
stamp_init()
stamp(0)
a("s_lshl_b32 s%d, s%d, 25" % (S_T0, S_G))
a("s_lshl_b32 s%d, s%d, 16" % (S_T0 + 1, S_C))
a("s_add_u32 s%d, s%d, s%d" % (S_T0, S_T0, S_T0 + 1))
a("s_lshl_b32 s%d, s%d, 14" % (S_T0 + 1, S_WAVE))
a("s_add_u32 s%d, s%d, s%d" % (S_T0, S_T0, S_T0 + 1))
a("s_add_u32 s%d, s%d, %d" % (S_T0, S_T0, 61440 * 512))
srd(SRD_A, S_K, 16384, S_T0)
srd(SRD_B, S_V, 16384, S_T0)
a("v_and_b32 v12, 15, v1")
a("v_lshrrev_b32 v13, 4, v1")
a("v_lshlrev_b32 v%d, 9, v12" % V_OK0)
a("v_lshl_add_u32 v%d, v13, 4, v%d" % (V_OK0, V_OK0))
a("v_add_u32 v%d, 8192, v%d" % (V_OK1, V_OK0))
a("v_lshlrev_b32 v%d, 4, v1" % V_OV)
a("s_barrier")
for j in range(1, 4):
    a("s_mov_b32 s%d, %d" % (S_T0 + 4 + j, 4096 * j))
WIN = DLY["win"]
nl = 0
for kb in range(2):
    for s in range(8):
        if nl >= WIN:
            a("s_waitcnt vmcnt(%d)" % (WIN - 1))
        a("buffer_load_dwordx4 %s, v%d, %s, 0 offen offset:%d nt" % (vr(KF + kb * 32 + s * 4, 4), V_OK0 if kb == 0 else V_OK1, sr(SRD_A, 4), s * 64))
        nl += 1
A_VLOADS = []
for i in range(16):
    so = "0" if i < 4 else "s%d" % (S_T0 + 4 + i // 4)
    if nl >= WIN and not DLY["vafter"]:
        A_VLOADS.append("s_waitcnt vmcnt(%d)" % (WIN - 1))
    A_VLOADS.append("buffer_load_dwordx4 %s, v%d, %s, %s offen offset:%d nt" % (vr(VF + i * 4, 4), V_OV, sr(SRD_B, 4), so, (i % 4) * 1024))
    nl += 1
a("v_lshrrev_b32 v14, 5, v1")
a("v_mul_u32_u24 v14, %d, v14" % VROW)
a("v_and_b32 v15, 31, v1")
a("v_lshl_add_u32 v%d, v15, 4, v14" % V_VW)
a("s_mul_i32 s%d, s%d, %d" % (S_T0, S_WAVE, 32 * VROW))
a("s_add_u32 s%d, s%d, %d" % (S_T0, S_T0, VSTB))
a("v_add_u32 v%d, s%d, v%d" % (V_VW, S_T0, V_VW))
a("v_lshrrev_b32 v14, 2, v12")
a("v_lshl_add_u32 v14, v13, 3, v14")
a("v_mul_u32_u24 v14, %d, v14" % VROW)
a("v_and_b32 v15, 3, v12")
a("v_lshl_add_u32 v%d, v15, 3, v14" % V_VR)
a("s_lshl_b32 s%d, s%d, 7" % (S_T0, S_WAVE))
a("s_add_u32 s%d, s%d, %d" % (S_T0, S_T0, VSTB))
a("v_add_u32 v%d, s%d, v%d" % (V_VR, S_T0, V_VR))
a("v_min_u32 v14, 2, v12")
a("v_lshlrev_b32 v15, 9, v14")
a("v_lshl_add_u32 v%d, v13, 4, v15" % V_QR)
a("v_lshlrev_b32 v15, 8, v14")
a("v_lshl_add_u32 v%d, v13, 4, v15" % V_PR)
a("s_lshl_b32 s%d, s%d, 6" % (S_T0, S_WAVE))
a("v_lshl_add_u32 v%d, v1, 1, s%d" % (V_PW, S_T0))
a("v_lshlrev_b32 v%d, 2, v1" % V_L4)
a("v_mov_b32 v%d, 0" % V_Z)
a("s_lshl_b32 s%d, s%d, 4" % (S_T0, S_WAVE))
a("v_mov_b32 v24, s%d" % S_T0)
V_STW = 24
for x in A_VLOADS[:DLY["n0"]]:
    a(x)
for x in A_VLOADS[DLY["n0"]:max(DLY["n0"], DLY["n1"])]:
    a(x)
for x in A_VLOADS[max(DLY["n0"], DLY["n1"]):]:
    a(x)
stamp(7)

for L in range(2):
    a("s_barrier")
    stamp(1 + 8 * L)
    if L == 0:
        a("s_waitcnt vmcnt(16)")
    stamp(2 + 8 * L)
    for s in range(8):
        a("ds_read_b128 %s, v%d offset:%d" % (vr(QF + 4 * s, 4), V_QR, QL + 64 * s))
    for s in range(8):
        a("s_waitcnt lgkmcnt(%d)" % (7 - s))
        for kb in range(2):
            a("v_mfma_f32_16x16x32_bf16 %s, %s, %s, %s" % (vr(SC + 4 * kb, 4), vr(QF + 4 * s, 4), vr(KF + kb * 32 + 4 * s, 4), "0" if s == 0 else vr(SC + 4 * kb, 4)))
    a("s_nop 7")
    a("s_nop 1")
    a("v_cvt_pk_bf16_f32 v48, v16, v17")
    a("v_cvt_pk_bf16_f32 v49, v20, v21")
    a("v_lshlrev_b32 v50, 16, v48")
    a("v_and_b32 v51, 0xffff0000, v48")
    a("v_lshlrev_b32 v52, 16, v49")
    a("v_and_b32 v53, 0xffff0000, v49")
    for r in range(50, 54):
        a("v_mul_f32 v%d, 0x3d800000, v%d" % (r, r))
    a("v_max_f32 v54, v50, v52")
    a("v_max_f32 v55, v51, v53")
    a("s_nop 1")
    dpp_reduce_row("v_max_f32", [54, 55])
    a("s_nop 0")
    a("v_sub_f32 v50, v50, v54")
    a("v_sub_f32 v52, v52, v54")
    a("v_sub_f32 v51, v51, v55")
    a("v_sub_f32 v53, v53, v55")
    for r in range(50, 54):
        a("v_mul_f32 v%d, 0x%x, v%d" % (r, LOG2E, r))
    for r in range(50, 54):
        a("v_exp_f32 v%d, v%d" % (r, r))
    a("s_nop 0")
    a("v_add_f32 v57, v50, v52")
    a("v_add_f32 v59, v51, v53")
    a("v_cvt_pk_bf16_f32 v48, v50, v51")
    a("v_cvt_pk_bf16_f32 v49, v52, v53")
    dpp_reduce_row("v_add_f32", [57, 59])
    a("v_mov_b32 v56, v54")
    a("v_mov_b32 v58, v55")
    set_exec_lt(16)
    a("ds_write_b16 v%d, v48 offset:%d" % (V_PW, PL))
    a("ds_write_b16_d16_hi v%d, v48 offset:%d" % (V_PW, PL + 256))
    a("ds_write_b16 v%d, v49 offset:%d" % (V_PW, PL + 32))
    a("ds_write_b16_d16_hi v%d, v49 offset:%d" % (V_PW, PL + 256 + 32))
    set_exec_lt(1)
    a("ds_write_b128 v%d, v[56:59] offset:%d" % (V_STW, ST))
    exec_all()
    stamp(3 + 8 * L)
    if L == 0:
        for i in range(16):
            a("s_waitcnt vmcnt(%d)" % (15 - i))
            a("ds_write_b128 v%d, %s offset:%d" % (V_VW, vr(VF + 4 * i, 4), VST + i * 2 * VROW))
    a("s_waitcnt lgkmcnt(0)")
    stamp(4 + 8 * L)
    a("s_barrier")
    stamp(5 + 8 * L)
    if L == 0:
        for s in range(4):
            for b in range(4):
                for hf in range(2):
                    a("ds_read_b64_tr_b16 %s, v%d offset:%d" % (vr(VF + (s * 4 + b) * 4 + hf * 2, 2), V_VR, VST + s * 32 * VROW + hf * 4 * VROW + b * 32))
    for s in range(4):
        a("ds_read_b128 %s, v%d offset:%d" % (vr(PF + 4 * s, 4), V_PR, PL + 64 * s))
    for w in range(4):
        a("ds_read_b128 %s, v%d offset:%d" % (vr(48 + 4 * w, 4), V_Z, ST + 16 * w))
    a("s_waitcnt lgkmcnt(0)")
    for s in range(4):
        for b in range(4):
            a("v_mfma_f32_16x16x32_bf16 %s, %s, %s, 0" % (vr(ACC + (s * 4 + b) * 4, 4), vr(PF + 4 * s, 4), vr(VF + (s * 4 + b) * 4, 4)))
    a("v_max3_f32 v16, v48, v52, v56")
    a("v_max3_f32 v18, v50, v54, v58")
    a("v_max_f32 v16, v16, v60")
    a("v_max_f32 v18, v18, v62")
    for w in range(4):
        a("v_sub_f32 v%d, v%d, v16" % (48 + 4 * w, 48 + 4 * w))
        a("v_sub_f32 v%d, v%d, v18" % (50 + 4 * w, 50 + 4 * w))
    for w in range(4):
        a("v_mul_f32 v%d, 0x%x, v%d" % (48 + 4 * w, LOG2E, 48 + 4 * w))
        a("v_mul_f32 v%d, 0x%x, v%d" % (50 + 4 * w, LOG2E, 50 + 4 * w))
    for w in range(4):
        a("v_exp_f32 v%d, v%d" % (48 + 4 * w, 48 + 4 * w))
        a("v_exp_f32 v%d, v%d" % (50 + 4 * w, 50 + 4 * w))
    a("s_nop 0")
    a("v_mul_f32 v17, v48, v49")
    a("v_mul_f32 v19, v50, v51")
    for w in range(1, 4):
        a("v_fmac_f32 v17, v%d, v%d" % (48 + 4 * w, 49 + 4 * w))
        a("v_fmac_f32 v19, v%d, v%d" % (50 + 4 * w, 51 + 4 * w))
    a("s_nop 7")
    for b in range(4):
        for h in range(2):
            a("v_mul_f32 v%d, v%d, v%d" % (20 + 0, 48 + 2 * h, ACC + b * 4 + h)) if False else None
    for b in range(4):
        for h in range(2):
            d = 32 + b * 2 + h
            a("v_mul_f32 v%d, v%d, v%d" % (d, 48 + 2 * h, ACC + b * 4 + h))
    for s in range(1, 4):
        for b in range(4):
            for h in range(2):
                d = 32 + b * 2 + h
                a("v_fmac_f32 v%d, v%d, v%d" % (d, 48 + 4 * s + 2 * h, ACC + (s * 4 + b) * 4 + h))
    a("s_lshl_b32 s%d, s%d, 16" % (S_T0, S_G))
    a("s_lshl_b32 s%d, s%d, 13" % (S_T0 + 1, S_WAVE))
    a("s_add_u32 s%d, s%d, s%d" % (S_T0, S_T0, S_T0 + 1))
    a("s_lshl_b32 s%d, s%d, 6" % (S_T0 + 1, S_C))
    a("s_add_u32 s%d, s%d, s%d" % (S_T0, S_T0, S_T0 + 1))
    a("s_add_u32 s%d, s%d, 0x%x" % (S_T0, S_T0, P[L]))
    a("s_add_u32 s%d, s%d, 4096" % (S_T0 + 1, S_T0))
    a("s_add_u32 s%d, s%d, 32768" % (S_T0 + 2, S_T0))
    a("s_add_u32 s%d, s%d, 36864" % (S_T0 + 3, S_T0))
    set_exec_lt(16)
    for h in range(2):
        for b in range(4):
            a("buffer_store_dword v%d, v%d, %s, s%d offen offset:%d sc1" % (32 + b * 2 + h, V_L4, sr(SRD_WS, 4), S_T0 + 2 * h + b // 2, (b % 2) * 2048))
    skip = a.new("Lskipml")
    a("s_cmp_lg_u32 s%d, 0" % S_WAVE)
    a("s_cbranch_scc1 %s" % skip)
    set_exec_lt(1)
    a("s_lshl_b32 s%d, s%d, 9" % (S_T0, S_G))
    a("s_lshl_b32 s%d, s%d, 3" % (S_T0 + 1, S_C))
    a("s_add_u32 s%d, s%d, s%d" % (S_T0, S_T0, S_T0 + 1))
    a("s_add_u32 s%d, s%d, 0x%x" % (S_T0, S_T0, ML[L]))
    a("buffer_store_dwordx2 v[16:17], v%d, %s, s%d offen sc1" % (V_Z, sr(SRD_WS, 4), S_T0))
    a("buffer_store_dwordx2 v[18:19], v%d, %s, s%d offen offset:256 sc1" % (V_Z, sr(SRD_WS, 4), S_T0))
    a.lab(skip)
    exec_all()
    stamp(6 + 8 * L)
    a("s_barrier")
    if L == 0:
        for _ in range(5):
            a("s_barrier")
stamp_flush()
a("s_endpgm")

a.lab("L_G")
V_TS = 63
if DLY["prio"]:
    a("s_setprio %d" % DLY["prio"])
stamp_init()
stamp(0)
BF = 64
WO = 128
W2 = 144
WOR = 160
W2R = 176
AF = 192
XP = 16
YP = 20
FT = 24
TT = 32
DD = 40
V_MF, V_MB = 2, 3
V_L16 = 4
V_AR = 5
V_TR = 6
V_PAIR = 7
V_ZERO = 8
V_T = 9
V_XRES0, V_XRES1, V_B20, V_B21 = 10, 11, 12, 13
V_B1 = 14
V_L32 = 15
S_J = 77
a("s_sub_u32 s%d, s%d, 4" % (S_J, S_WAVE))
a("v_cmp_gt_u32 vcc, 56, v1")
a("v_mov_b32 v%d, 0" % V_ZERO)
a("v_lshlrev_b32 v%d, 4, v1" % V_L16)
a("v_cndmask_b32 v%d, 0, 1.0, vcc" % V_MF)
a("v_cndmask_b32 v%d, 0, -1, vcc" % V_MB)
a("v_lshrrev_b32 v%d, 4, v1" % V_T)
a("v_lshlrev_b32 v%d, 4, v%d" % (V_AR, V_T))
a("v_and_b32 v32, 15, v1")
a("v_lshrrev_b32 v33, 2, v32")
a("v_lshl_add_u32 v33, v%d, 3, v33" % V_T)
a("v_lshlrev_b32 v33, 5, v33")
a("v_and_b32 v34, 3, v32")
a("v_lshl_add_u32 v%d, v34, 3, v33" % V_TR)
a("v_lshrrev_b32 v%d, 1, v1" % V_PAIR)
a("v_lshlrev_b32 v%d, 2, v%d" % (V_PAIR, V_PAIR))
a("v_lshlrev_b32 v%d, 5, v1" % V_L32)
for i in range(4):
    a("v_mov_b32 v%d, 0" % (XP + i))


def load_w16(srd_lo, base_ptr, rowstride, col0_sgpr, lds_base):
    a("s_lshl_b32 s%d, s%d, 1" % (S_T0, col0_sgpr))
    srd(srd_lo, base_ptr, 448 * rowstride, S_T0)
    a("s_sub_u32 s%d, s%d, s%d" % (srd_lo + 2, srd_lo + 2, S_T0))
    a("v_lshrrev_b32 v32, 1, v1")
    a("s_mov_b32 s%d, %d" % (S_T0 + 1, rowstride))
    a("v_mul_lo_u32 v32, v32, s%d" % (S_T0 + 1))
    a("v_and_b32 v33, 1, v1")
    a("v_lshl_add_u32 v32, v33, 4, v32")
    for i in range(14):
        a("s_mov_b32 s%d, %d" % (S_T0 + 2 + i, i * 32 * rowstride))
    for i in range(14):
        a("buffer_load_dwordx4 %s, v32, %s, s%d offen%s" % (vr(BF + 4 * i, 4), sr(srd_lo, 4), S_T0 + 2 + i, " nt" if DLY["wnt"] else ""))


def stage_w16(lds_base, extra_outstanding=0):
    for i in range(14):
        a("s_waitcnt vmcnt(%d)" % (13 - i + extra_outstanding))
        a("ds_write_b128 v%d, %s offset:%d" % (V_L16, vr(BF + 4 * i, 4), lds_base + 1024 * i))
    a("s_waitcnt lgkmcnt(0)")
    for s in range(14):
        for hf in range(2):
            a("ds_read_b64_tr_b16 %s, v%d offset:%d" % (vr(BF + 4 * s + 2 * hf, 2), V_TR, lds_base + s * 1024 + hf * 128))
    a("s_waitcnt lgkmcnt(0)")


RAW = 128
PW = 192


def load_rows16(srd_lo, base_ptr, total_bytes, row0_sgpr):
    a("s_mul_i32 s%d, s%d, 896" % (S_T0, row0_sgpr))
    srd(srd_lo, base_ptr, 16 * 896, S_T0)
    for i in range(4):
        a("s_mov_b32 s%d, %d" % (S_T0 + 1 + i, i * 4 * 896))
    set_exec_lt(56)
    for r in range(16):
        a("buffer_load_dwordx4 %s, v%d, %s, s%d offen offset:%d nt" % (vr(RAW + 4 * r, 4), V_L16, sr(srd_lo, 4), S_T0 + 1 + r // 4, (r % 4) * 896))
    exec_all()


def perm_rows16():
    a("s_waitcnt vmcnt(0)")
    for i in range(8):
        for d in range(4):
            lo = RAW + 4 * (2 * i) + d
            hi = RAW + 4 * (2 * i + 1) + d
            a("v_perm_b32 v%d, v%d, v%d, s%d" % (PW + i * 8 + 2 * d, hi, lo, S_SEL0))
            a("v_perm_b32 v%d, v%d, v%d, s%d" % (PW + i * 8 + 2 * d + 1, hi, lo, S_SEL1))


S_PAIR = 60


def part_gemv(acc):
    for i in range(8):
        for col in range(8):
            if i == 0:
                a("v_dot2_f32_bf16 v%d, v%d, s%d, 0" % (acc + col, PW + col, S_PAIR))
            else:
                a("v_dot2_f32_bf16 v%d, v%d, s%d, v%d" % (acc + col, PW + i * 8 + col, S_PAIR + i, acc + col))
    a("s_nop 2")


def store_pairs16(vsrc, ws_off_sgpr, vt):
    a("s_nop 1")
    a("v_mov_b32_dpp v%d, v%d quad_perm:[1,0,3,2] row_mask:0xf bank_mask:0xf" % (vt, vsrc))
    a("s_nop 0")
    a("v_cvt_pk_bf16_f32 v%d, v%d, v%d" % (vt, vsrc, vt))
    a("s_mov_b32 exec_lo, 0x5555")
    a("s_mov_b32 exec_hi, 0")
    a("buffer_store_dword v%d, v%d, %s, s%d offen sc1" % (vt, V_PAIR, sr(SRD_WS, 4), ws_off_sgpr))
    exec_all()


def qproj(L):
    layernorm(XP, YP, FT, TT, V_MF, V_MB)
    gemv16(YP, YL, V_L16, V_AR, AF, BF, DD)
    a("s_lshl_b32 s%d, s%d, 10" % (S_T0, S_G))
    a("s_lshl_b32 s%d, s%d, 5" % (S_T0 + 1, S_C))
    a("s_add_u32 s%d, s%d, s%d" % (S_T0, S_T0, S_T0 + 1))
    if L == 0:
        a("s_lshl_b32 s%d, s%d, 1" % (S_T0, S_T0))
        a("s_nop 1")
        a("v_mov_b32_dpp v%d, v%d quad_perm:[1,0,3,2] row_mask:0xf bank_mask:0xf" % (TT, DD))
        a("v_lshlrev_b32 v%d, 1, v%d" % (TT + 2, V_PAIR))
        a("v_cvt_pk_bf16_f32 v%d, v%d, v%d" % (TT, DD, TT))
        a("v_mov_b32 v%d, s%d" % (TT + 1, S_TAG))
        a("s_mov_b32 exec_lo, 0x5555")
        a("s_mov_b32 exec_hi, 0")
        a("buffer_store_dwordx2 v[%d:%d], v%d, %s, s%d offen sc1" % (TT, TT + 1, TT + 2, sr(SRD_WS, 4), S_T0))
        exec_all()
    else:
        a("s_add_u32 s%d, s%d, 0x%x" % (S_T0, S_T0, Q[L]))
        store_pairs16(DD, S_T0, TT)


V_TAG = 62


def load_tag_issue():
    a("s_mov_b32 s%d, 0x%x" % (S_T0, EPOCH))
    a("buffer_load_dword v%d, v%d, %s, s%d offen sc1" % (V_TAG, V_ZERO, sr(SRD_WS, 4), S_T0))


def load_tag_finish():
    a("s_waitcnt vmcnt(0)")
    a("v_readfirstlane_b32 s%d, v%d" % (S_TAG, V_TAG))
    a("s_add_u32 s%d, s%d, 0x9e3779b9" % (S_TAG, S_TAG))


def gather_q(L, polled):
    if L == 1:
        a("s_lshl_b32 s%d, s%d, 10" % (S_T0 + 8, S_G))
        a("s_add_u32 s%d, s%d, 0x%x" % (S_T0 + 8, S_T0 + 8, Q[L]))
        poll([(FT, 4, V_L16, "s%d" % (S_T0 + 8), 0)], TT, DLY["q"])
    else:
        a("s_lshl_b32 s%d, s%d, 11" % (S_T0 + 8, S_G))
        a("v_lshlrev_b32 v%d, 5, v1" % (TT + 1))
        a("s_mov_b32 s%d, 0" % S_CNT)
        a("buffer_load_dwordx4 v[44:47], v%d, %s, s%d offen sc1" % (TT + 1, sr(SRD_WS, 4), S_T0 + 8))
        a("buffer_load_dwordx4 v[48:51], v%d, %s, s%d offen offset:16 sc1" % (TT + 1, sr(SRD_WS, 4), S_T0 + 8))
        a("s_waitcnt vmcnt(0)")
        a("s_branch L_q0chk2")
        a.lab("L_q0poll")
        a("buffer_load_dwordx4 v[44:47], v%d, %s, s%d offen sc1" % (TT + 1, sr(SRD_WS, 4), S_T0 + 8))
        a("buffer_load_dwordx4 v[48:51], v%d, %s, s%d offen offset:16 sc1" % (TT + 1, sr(SRD_WS, 4), S_T0 + 8))
        a("s_waitcnt vmcnt(0)")
        a.lab("L_q0chk2")
        a("v_xor_b32 v45, s%d, v45" % S_TAG)
        a("v_xor_b32 v47, s%d, v47" % S_TAG)
        a("v_xor_b32 v49, s%d, v49" % S_TAG)
        a("v_xor_b32 v51, s%d, v51" % S_TAG)
        a("v_or3_b32 v45, v45, v47, v49")
        a("v_or_b32 v45, v45, v51")
        a("v_cmp_ne_u32 vcc, 0, v45")
        a("s_add_u32 s%d, s%d, 1" % (S_CNT, S_CNT))
        a("s_cbranch_vccz L_q0done")
        a("s_sleep %d" % DLY["fr"])
        a("s_cmp_lt_u32 s%d, 0x%x" % (S_CNT, POLL_LIMIT))
        a("s_cbranch_scc1 L_q0poll")
        a.lab("L_q0done")
        if DIAG:
            a("v_writelane_b32 v%d, s%d, 46" % (V_TS, S_CNT))
        a("v_mov_b32 v%d, v44" % FT)
        a("v_mov_b32 v%d, v46" % (FT + 1))
        a("v_mov_b32 v%d, v48" % (FT + 2))
        a("v_mov_b32 v%d, v50" % (FT + 3))
    a("ds_write_b128 v%d, %s offset:%d" % (V_L16, vr(FT, 4), QL))
    a("s_waitcnt lgkmcnt(0)")


a("s_cmp_eq_u32 s%d, 0" % S_J)
a("s_cbranch_scc1 L_G0")
a("s_cmp_eq_u32 s%d, 1" % S_J)
a("s_cbranch_scc1 L_G1")
a("s_cmp_eq_u32 s%d, 2" % S_J)
a("s_cbranch_scc1 L_G2")
a("s_branch L_G3")


a.lab("L_G0")
NPOLL = 0
srd(SRD_B, S_X, 896)
a("buffer_load_dwordx4 %s, v%d, %s, 0 offen" % (vr(XP, 4), V_L16, sr(SRD_B, 4)))
a("s_mov_b32 s%d, 0x%x" % (S_T0, EPOCH))
a("buffer_load_dword v%d, v%d, %s, s%d offen sc1" % (V_B1, V_ZERO, sr(SRD_WS, 4), S_T0))
a("s_lshl_b32 s%d, s%d, 9" % (S_T0 + 20, S_G))
a("s_lshl_b32 s%d, s%d, 4" % (S_T0 + 21, S_C))
a("s_add_u32 s%d, s%d, s%d" % (S_T0 + 20, S_T0 + 20, S_T0 + 21))
load_w16(SRD_A, S_WQ, 8192, S_T0 + 20, WQS)
if DLY["b0late"]:
    a("s_waitcnt vmcnt(%d)" % (14 - DLY["b0late"]))
a("s_barrier")
stage_w16(WQS, 0)
a("v_readfirstlane_b32 s%d, v%d" % (S_TAG, V_B1))
a("s_add_u32 s%d, s%d, 0x9e3779b9" % (S_TAG, S_TAG))
stamp(1)
qproj(0)
stamp(2)
a("s_barrier")
a("v_lshlrev_b32 v%d, 5, v1" % TT)
a("s_mov_b32 s%d, 0" % S_CNT)
a("s_mov_b32 s%d, 0x%x" % (S_T0 + 1, DONE))
a.lab("L_flagpoll")
a("buffer_load_dwordx4 v[44:47], v%d, %s, s%d offen sc1" % (TT, sr(SRD_WS, 4), S_T0 + 1))
a("buffer_load_dwordx4 v[48:51], v%d, %s, s%d offen offset:16 sc1" % (TT, sr(SRD_WS, 4), S_T0 + 1))
a("s_waitcnt vmcnt(0)")
for r in range(44, 52):
    a("v_xor_b32 v%d, s%d, v%d" % (r, S_TAG, r))
a("v_or3_b32 v45, v44, v45, v46")
a("v_or3_b32 v47, v47, v48, v49")
a("v_or3_b32 v45, v45, v50, v51")
a("v_or_b32 v45, v45, v47")
a("v_cmp_ne_u32 vcc, 0, v45")
a("s_add_u32 s%d, s%d, 1" % (S_CNT, S_CNT))
a("s_cbranch_vccz L_flagdone")
a("s_sleep %d" % DLY["fr"])
a("s_cmp_lt_u32 s%d, 0x%x" % (S_CNT, POLL_LIMIT))
a("s_cbranch_scc1 L_flagpoll")
a.lab("L_flagdone")
if DIAG:
    a("v_writelane_b32 v%d, s%d, 47" % (V_TS, S_CNT))
stamp(3)
for _ in range(6):
    a("s_barrier")
a("s_mov_b32 s%d, 0x%x" % (S_T0 + 8, X2))
set_exec_lt(56)
poll([(XP, 4, V_L16, "s%d" % (S_T0 + 8), 0)], TT, DLY["x2"], first_sleep=True)
exec_all()
stamp(4)
qproj(1)
stamp(5)
a("s_barrier")
stamp_flush()
a("s_endpgm")

a.lab("L_G1")
NPOLL = 0
a("s_barrier")
a("s_setprio 0")
for _ in range(DLY["wdly"] // 64):
    a("s_sleep 64")
a("s_sleep %d" % (DLY["wdly"] % 64))
a("s_mul_i32 s%d, s%d, 224" % (S_T0 + 20, S_G))
a("s_lshl_b32 s%d, s%d, 4" % (S_T0 + 21, S_CP))
a("s_add_u32 s%d, s%d, s%d" % (S_T0 + 20, S_T0 + 20, S_T0 + 21))
srd(SRD_B, S_B1, 3584)
a("v_lshlrev_b32 v%d, 1, v1" % TT)
a("s_lshl_b32 s%d, s%d, 1" % (S_T0 + 22, S_T0 + 20))
a("buffer_load_ushort v%d, v%d, %s, s%d offen" % (V_B1, TT, sr(SRD_B, 4), S_T0 + 22))
skipw = a.new("Lskipw")
a("s_cmp_ge_u32 s%d, 14" % S_C)
a("s_cbranch_scc1 %s" % skipw)
load_w16(SRD_A, S_W1, 3584, S_T0 + 20, W1S)
load_rows16(SRD_C, S_W2, 1792 * 896, S_T0 + 20)
a.lab(skipw)
a("s_setprio %d" % DLY["prio"])
a("s_barrier")
a("s_barrier")
a("s_barrier")
a("s_barrier")
stage_w16(W1S, 16)
perm_rows16()
a("v_lshlrev_b32 v%d, 16, v%d" % (V_B1, V_B1))
a("v_lshlrev_b32 v%d, 12, v1" % V_L32)
a("s_mul_i32 s%d, s%d, 14" % (S_T0 + 23, S_G))
a("s_add_u32 s%d, s%d, s%d" % (S_T0 + 23, S_T0 + 23, S_CP))
a("s_lshl_b32 s%d, s%d, 4" % (S_T0 + 23, S_T0 + 23))
AF1 = RAW
for L in range(2):
    if L == 1:
        a("s_barrier")
        a("s_barrier")
    for _ in range(3 if L == 1 else 1):
        a("s_barrier")
    a("s_mov_b32 s%d, 0x%x" % (S_T0 + 8, X1[L]))
    set_exec_lt(56)
    poll([(XP, 4, V_L16, "s%d" % (S_T0 + 8), 0)], TT, DLY["x1"], first_sleep=True)
    exec_all()
    stamp(1 + 8 * L)
    layernorm(XP, YP, FT, TT, V_MF, V_MB)
    layernorm(YP, XP, FT, TT, V_MF, V_MB)
    gemv16(XP, YL2, V_L16, V_AR, AF1, BF, DD)
    a("v_cvt_pk_bf16_f32 v%d, v%d, v%d" % (TT, DD, DD))
    a("v_and_b32 v%d, 0xffff0000, v%d" % (TT, TT))
    a("v_add_f32 v%d, v%d, v%d" % (TT, TT, V_B1))
    a("v_cvt_pk_bf16_f32 v%d, v%d, v%d" % (TT, TT, TT))
    a("v_and_b32 v%d, 0xffff0000, v%d" % (TT, TT))
    a("v_mul_f32 v%d, v%d, v%d" % (TT + 1, TT, TT))
    a("v_mov_b32 v%d, 0x3f4c422a" % (TT + 2))
    a("v_fmac_f32 v%d, 0x3d122279, v%d" % (TT + 2, TT + 1))
    a("v_mul_f32 v%d, v%d, v%d" % (TT + 2, TT + 2, TT))
    a("v_mul_f32 v%d, 0xc038aa3b, v%d" % (TT + 2, TT + 2))
    a("v_exp_f32 v%d, v%d" % (TT + 2, TT + 2))
    a("s_nop 0")
    a("v_add_f32 v%d, 1.0, v%d" % (TT + 2, TT + 2))
    a("v_rcp_f32 v%d, v%d" % (TT + 2, TT + 2))
    a("s_nop 0")
    a("v_mul_f32 v%d, v%d, v%d" % (TT + 3, TT, TT + 2))
    a("s_nop 1")
    a("v_mov_b32_dpp v%d, v%d quad_perm:[1,0,3,2] row_mask:0xf bank_mask:0xf" % (TT + 4, TT + 3))
    a("s_nop 0")
    a("v_cvt_pk_bf16_f32 v%d, v%d, v%d" % (TT + 4, TT + 3, TT + 4))
    a("s_nop 0")
    for i in range(8):
        a("v_readlane_b32 s%d, v%d, %d" % (S_PAIR + i, TT + 4, 2 * i))
    a("s_nop 1")
    part_gemv(44)
    a("s_add_u32 s%d, s%d, 0x%x" % (S_T0, S_T0 + 23, R2[L]))
    skip = a.new("Lskipr2")
    a("s_cmp_ge_u32 s%d, 14" % S_C)
    a("s_cbranch_scc1 %s" % skip)
    set_exec_lt(56)
    a("buffer_store_dwordx4 v[44:47], v%d, %s, s%d offen sc1" % (V_L32, sr(SRD_WS, 4), S_T0))
    a("buffer_store_dwordx4 v[48:51], v%d, %s, s%d offen offset:2048 sc1" % (V_L32, sr(SRD_WS, 4), S_T0))
    exec_all()
    a.lab(skip)
    stamp(2 + 8 * L)
    a("s_barrier")
    if L == 0:
        a("s_barrier")
        a("s_barrier")
stamp_flush()
a("s_endpgm")

a.lab("L_G2")
NPOLL = 0
for i in range(4):
    a("v_mov_b32 v%d, 0" % (FT + i))
set_exec_lt(32)
a("ds_write_b128 v%d, %s offset:%d" % (V_L16, vr(FT, 4), QL + 1024))
set_exec_lt(16)
a("ds_write_b128 v%d, %s offset:%d" % (V_L16, vr(FT, 4), PL + 512))
exec_all()
load_tag_issue()
a("s_barrier")
load_tag_finish()
for _ in range(DLY["f"] // 64):
    a("s_sleep 64")
a("s_sleep %d" % (DLY["f"] % 64))
gather_q(0, False)
stamp(2)
WO_LOADS = True
a("v_lshlrev_b32 v%d, 13, v1" % V_L32)
a("v_add_u32 v%d, 4096, v%d" % (V_B1, V_L32))
a("s_lshl_b32 s%d, s2, 4" % (S_T0 + 23))
for L in range(2):
    a("s_barrier")
    if L == 0:
        a("s_setprio 0")
        a("s_lshl_b32 s%d, s%d, 9" % (S_T0 + 20, S_G))
        a("s_lshl_b32 s%d, s%d, 4" % (S_T0 + 21, S_C))
        a("s_add_u32 s%d, s%d, s%d" % (S_T0 + 20, S_T0 + 20, S_T0 + 21))
        load_rows16(SRD_C, S_WO, 4096 * 896, S_T0 + 20)
        a("s_setprio %d" % DLY["prio"])
    a("s_barrier")
    if L == 0:
        perm_rows16()
    a("s_barrier")
    a("v_and_b32 v%d, 31, v1" % TT)
    a("v_lshrrev_b32 v%d, 5, v1" % (TT + 1))
    a("v_lshlrev_b32 v%d, 6, v%d" % (TT + 2, TT))
    a("v_lshl_add_u32 v%d, v%d, 5, v%d" % (TT + 2, TT + 1, TT + 2))
    a("v_lshlrev_b32 v%d, 3, v%d" % (TT + 3, TT))
    a("s_lshl_b32 s%d, s%d, 16" % (S_T0 + 8, S_G))
    a("s_lshl_b32 s%d, s%d, 11" % (S_T0 + 9, S_C))
    a("s_add_u32 s%d, s%d, s%d" % (S_T0 + 8, S_T0 + 8, S_T0 + 9))
    a("s_add_u32 s%d, s%d, 0x%x" % (S_T0 + 8, S_T0 + 8, P[L]))
    a("s_lshl_b32 s%d, s%d, 9" % (S_T0 + 9, S_G))
    a("s_lshr_b32 s%d, s%d, 4" % (S_T0 + 10, S_C))
    a("s_lshl_b32 s%d, s%d, 8" % (S_T0 + 10, S_T0 + 10))
    a("s_add_u32 s%d, s%d, s%d" % (S_T0 + 9, S_T0 + 9, S_T0 + 10))
    a("s_add_u32 s%d, s%d, 0x%x" % (S_T0 + 9, S_T0 + 9, ML[L]))
    poll([(44, 4, TT + 2, "s%d" % (S_T0 + 8), 0), (48, 4, TT + 2, "s%d" % (S_T0 + 8), 16), (52, 2, TT + 3, "s%d" % (S_T0 + 9), 0)], TT + 4, DLY["p"] if L else DLY["p0"], retry=(None if L else DLY["r0"]))
    stamp(3 + 8 * L)
    a("v_mov_b32 v54, v52")
    a("s_nop 1")
    dpp_reduce64("v_max_f32", [54])
    a("v_readlane_b32 s%d, v54, 63" % S_T0)
    a("s_nop 1")
    a("v_subrev_f32 v54, s%d, v52" % S_T0)
    a("v_mul_f32 v54, 0x%x, v54" % LOG2E)
    a("v_exp_f32 v54, v54")
    a("s_nop 0")
    for i in range(8):
        a("v_mul_f32 v%d, v%d, v54" % (44 + i, 44 + i))
    a("v_mul_f32 v53, v53, v54")
    a("s_nop 1")
    dpp_reduce32("v_add_f32", list(range(44, 52)) + [53])
    a("s_nop 0")
    a("v_rcp_f32 v53, v53")
    a("s_nop 0")
    for i in range(8):
        a("v_mul_f32 v%d, v%d, v53" % (44 + i, 44 + i))
    for i in range(4):
        a("v_cvt_pk_bf16_f32 v%d, v%d, v%d" % (56 + i, 44 + 2 * i, 45 + 2 * i))
    a("s_nop 0")
    for i in range(4):
        a("v_readlane_b32 s%d, v%d, 31" % (S_PAIR + i, 56 + i))
        a("v_readlane_b32 s%d, v%d, 63" % (S_PAIR + 4 + i, 56 + i))
    a("s_nop 1")
    part_gemv(44)
    a("s_add_u32 s%d, s%d, 0x%x" % (S_T0, S_T0 + 23, R1[L]))
    set_exec_lt(56)
    a("buffer_store_dwordx4 v[44:47], v%d, %s, s%d offen sc1" % (V_L32, sr(SRD_WS, 4), S_T0))
    a("buffer_store_dwordx4 v[48:51], v%d, %s, s%d offen sc1" % (V_B1, sr(SRD_WS, 4), S_T0))
    exec_all()
    stamp(4 + 8 * L)
    a("s_barrier")
    if L == 0:
        for _ in range(4):
            a("s_barrier")
        gather_q(1, True)
        stamp(5)
stamp_flush()
a("s_endpgm")

a.lab("L_G3")
NPOLL = 0
dbg_stamp()
a("s_mul_i32 s%d, s2, %d" % (S_T0, CLR_PER_WG))
a("s_add_u32 s%d, s%d, 0x%x" % (S_T0, S_T0, CLR_BASE))
a("s_add_u32 s%d, s%d, 4096" % (S_T0 + 1, S_T0))
a("s_add_u32 s%d, s%d, 8192" % (S_T0 + 2, S_T0))
for i in range(4):
    a("v_mov_b32 v%d, -1" % (FT + i))
for i in range(10):
    a("buffer_store_dwordx4 %s, v%d, %s, s%d offen offset:%d sc1" % (vr(FT, 4), V_L16, sr(SRD_WS, 4), S_T0 + i // 4, (i % 4) * 1024))
load_tag_issue()
a("s_barrier")
load_tag_finish()
stamp(5)
a("s_lshl_b32 s%d, s2, 3" % S_T0)
a("s_add_u32 s%d, s%d, 0x%x" % (S_T0, S_T0, DONE))
a("v_mov_b32 v%d, s%d" % (TT, S_TAG))
a("v_mov_b32 v%d, s%d" % (TT + 1, S_TAG))
set_exec_lt(1)
a("buffer_store_dwordx2 v[%d:%d], v%d, %s, s%d offen sc1" % (TT, TT + 1, V_ZERO, sr(SRD_WS, 4), S_T0))
exec_all()
a("s_barrier")
dbg_stamp()
a("s_barrier")
dbg_stamp()
S_CB = 87
a("s_mul_i32 s%d, s%d, 14" % (S_CB, S_G))
a("s_add_u32 s%d, s%d, s%d" % (S_CB, S_CB, S_CP))
a("s_lshl_b32 s%d, s%d, 3" % (S_T0 + 23, S_CB))
srd(SRD_A, S_X, 896)
srd(SRD_B, S_B2, 896)
a("buffer_load_dwordx2 v[%d:%d], v%d, %s, s%d offen" % (TT, TT + 1, V_ZERO, sr(SRD_A, 4), S_T0 + 23))
a("buffer_load_dwordx2 v[%d:%d], v%d, %s, s%d offen" % (TT + 2, TT + 3, V_ZERO, sr(SRD_B, 4), S_T0 + 23))
a("s_waitcnt vmcnt(0)")
XR = 16
B2R = 20
for i in range(2):
    a("v_lshlrev_b32 v%d, 16, v%d" % (XR + 2 * i, TT + i))
    a("v_and_b32 v%d, 0xffff0000, v%d" % (XR + 2 * i + 1, TT + i))
    a("v_lshlrev_b32 v%d, 16, v%d" % (B2R + 2 * i, TT + 2 + i))
    a("v_and_b32 v%d, 0xffff0000, v%d" % (B2R + 2 * i + 1, TT + 2 + i))
srd(SRD_A, S_OUT, 896)


def rnd4(r, t):
    a("v_cvt_pk_bf16_f32 v%d, v%d, v%d" % (t, r, r + 1))
    a("v_cvt_pk_bf16_f32 v%d, v%d, v%d" % (t + 1, r + 2, r + 3))
    a("v_lshlrev_b32 v%d, 16, v%d" % (r, t))
    a("v_and_b32 v%d, 0xffff0000, v%d" % (r + 1, t))
    a("v_lshlrev_b32 v%d, 16, v%d" % (r + 2, t + 1))
    a("v_and_b32 v%d, 0xffff0000, v%d" % (r + 3, t + 1))


for L in range(2):
    if L == 1:
        a("s_barrier")
        a("s_barrier")
    a("s_barrier")
    a("s_barrier")
    a("s_lshl_b32 s%d, s%d, 12" % (S_T0 + 8, S_CB))
    a("s_add_u32 s%d, s%d, 0x%x" % (S_T0 + 8, S_T0 + 8, R1[L]))
    poll([(44 + 4 * i, 4, V_L16, "s%d" % (S_T0 + 8), 1024 * i) for i in range(4)], TT, DLY["r1"], retry=(None if L else DLY["r0"]))
    stamp(1 + 8 * L)
    for i in range(4):
        a("v_add_f32 v%d, v%d, v%d" % (44 + i, 44 + i, 48 + i))
        a("v_add_f32 v%d, v%d, v%d" % (52 + i, 52 + i, 56 + i))
    for i in range(4):
        a("v_add_f32 v%d, v%d, v%d" % (44 + i, 44 + i, 52 + i))
    a("s_nop 1")
    dpp_reduce64("v_add_f32", [44, 45, 46, 47])
    rnd4(44, TT)
    for i in range(4):
        a("v_add_f32 v%d, v%d, v%d" % (XR + i, XR + i, 44 + i))
    rnd4(XR, TT)
    a("s_add_u32 s%d, s%d, 0x%x" % (S_T0, S_T0 + 23, X1[L]))
    skip = a.new("Lskipx1")
    a("s_cmp_ge_u32 s%d, 14" % S_C)
    a("s_cbranch_scc1 %s" % skip)
    a("s_mov_b32 exec_lo, 0")
    a("s_mov_b32 exec_hi, 0x80000000")
    a("buffer_store_dwordx2 v[%d:%d], v%d, %s, s%d offen sc1" % (TT, TT + 1, V_ZERO, sr(SRD_WS, 4), S_T0))
    exec_all()
    a.lab(skip)
    stamp(2 + 8 * L)
    dbg_stamp()
    a("s_barrier")
    a("s_barrier")
    a("s_lshl_b32 s%d, s%d, 11" % (S_T0 + 8, S_CB))
    a("s_add_u32 s%d, s%d, 0x%x" % (S_T0 + 8, S_T0 + 8, R2[L]))
    a("v_min_u32 v%d, 47, v1" % (TT + 2))
    a("v_lshlrev_b32 v%d, 4, v%d" % (TT + 2, TT + 2))
    poll([(44, 4, V_L16, "s%d" % (S_T0 + 8), 0), (48, 4, TT + 2, "s%d" % (S_T0 + 8), 1024)], TT, DLY["r2"], first_sleep=True)
    stamp(3 + 8 * L)
    a("v_cmp_gt_u32 vcc, 48, v1")
    a("s_nop 1")
    for i in range(4):
        a("v_cndmask_b32 v%d, 0, v%d, vcc" % (48 + i, 48 + i))
    for i in range(4):
        a("v_add_f32 v%d, v%d, v%d" % (44 + i, 44 + i, 48 + i))
    a("s_nop 1")
    dpp_reduce64("v_add_f32", [44, 45, 46, 47])
    rnd4(44, TT)
    for i in range(4):
        a("v_add_f32 v%d, v%d, v%d" % (44 + i, 44 + i, B2R + i))
    rnd4(44, TT)
    for i in range(4):
        a("v_add_f32 v%d, v%d, v%d" % (XR + i, XR + i, 44 + i))
    rnd4(XR, TT)
    skip = a.new("Lskipx2")
    a("s_cmp_ge_u32 s%d, 14" % S_C)
    a("s_cbranch_scc1 %s" % skip)
    a("s_mov_b32 exec_lo, 0")
    a("s_mov_b32 exec_hi, 0x80000000")
    if L == 0:
        a("s_add_u32 s%d, s%d, 0x%x" % (S_T0, S_T0 + 23, X2))
        a("buffer_store_dwordx2 v[%d:%d], v%d, %s, s%d offen sc1" % (TT, TT + 1, V_ZERO, sr(SRD_WS, 4), S_T0))
    else:
        a("buffer_store_dwordx2 v[%d:%d], v%d, %s, s%d offen" % (TT, TT + 1, V_ZERO, sr(SRD_A, 4), S_T0 + 23))
    exec_all()
    a.lab(skip)
    stamp(4 + 8 * L)
    dbg_stamp()
    if L == 0:
        a("s_barrier")
        a("s_barrier")
skip = a.new("Lskipep")
a("s_cmp_lg_u32 s2, 0")
a("s_cbranch_scc1 %s" % skip)
a("s_mov_b32 s%d, 0x%x" % (S_T0, EPOCH))
a("v_mov_b32 v%d, s%d" % (TT, S_TAG))
set_exec_lt(1)
a("buffer_store_dword v%d, v%d, %s, s%d offen sc1" % (TT, V_ZERO, sr(SRD_WS, 4), S_T0))
exec_all()
if DBG:
    srd(SRD_B, S_DBG, 256)
    a("v_readlane_b32 s96, v61, 0")
    a("v_readlane_b32 s97, v61, 8")
    a("v_cmp_gt_u32 vcc, 8, v1")
    a("v_mov_b32 v60, s96")
    a("v_mov_b32 v59, s97")
    a("v_cndmask_b32 v60, v59, v60, vcc")
    a("v_sub_u32 v61, v61, v60")
    a("v_lshlrev_b32 v60, 2, v1")
    set_exec_lt(16)
    a("buffer_store_dword v61, v60, %s, 0 offen" % sr(SRD_B, 4))
    exec_all()
a.lab(skip)
stamp_flush()
a.lab("L_end")
a("s_endpgm")

a.l.append('.section .rodata,"a"')
a.l.append(".p2align 6")
a.l.append(".amdhsa_kernel %s_kernel" % NAME)
a.l.append("  .amdhsa_next_free_vgpr 256")
a.l.append("  .amdhsa_next_free_sgpr 102")
a.l.append("  .amdhsa_accum_offset 256")
a.l.append("  .amdhsa_group_segment_fixed_size 0")
a.l.append("  .amdhsa_kernarg_size 104")
a.l.append("  .amdhsa_user_sgpr_count 2")
a.l.append("  .amdhsa_user_sgpr_kernarg_segment_ptr 1")
a.l.append("  .amdhsa_system_sgpr_workgroup_id_x 1")
a.l.append(".end_amdhsa_kernel")

out = sys.argv[1] if len(sys.argv) > 1 else "cdna_kernels/%s.s" % NAME
open(out, "w").write(a.text())
print("wrote", out, "lines", len(a.l), "lds", LDS_SIZE)
```

```python
import sys, os

NAME = "interleave_layers__sliding_block_cached__mixer_channel_mlp__decode"

Q0T = 0x0000
EPOCH = 0x4000
DONE = 0x5000
BLK = 0x8000
oP = 0x0
oR1 = 0x80000
oR2 = 0xF0000
oML = 0x160000
oX1 = 0x161000
oXN = 0x161400
oQN = 0x162000
LS = 0x164000
CLR_PER_WG = 12288
WS_SIZE = BLK + 256 * CLR_PER_WG
assert BLK + 2 * LS <= WS_SIZE
TS_BASE = 0x400000

VROW = 544
QL = 0
PL = QL + 3 * 512
ST = PL + 3 * 256
WQS = ST + 64
W1S = WQS + 14336
YL = W1S + 14336
YL2 = YL + 1024
VSTB = YL2 + 1024
LDS_SIZE = VSTB + 128 * VROW

POLL_LIMIT = 1 << 20
DIAG = int(os.environ.get("DIAG", "0"))
DBG = int(os.environ.get("DBG", "0"))
DLY = dict(p=14, r1=20, x1=26, r2=20, x2=26, q=14, f=110, fr=8, r=4, p0=14, r0=12, wdly=150, prio=3, chk=0)
for k in DLY:
    DLY[k] = int(os.environ.get("DLY_" + k, DLY[k]))


class A:
    def __init__(self):
        self.l = []
        self.n = 0

    def __call__(self, s):
        self.l.append("    " + s)

    def lab(self, s):
        self.l.append(s + ":")

    def new(self, p="L"):
        self.n += 1
        return "%s_%d" % (p, self.n)

    def text(self):
        return "\n".join(self.l) + "\n"


a = A()


def vr(lo, n):
    return "v[%d:%d]" % (lo, lo + n - 1) if n > 1 else "v%d" % lo


def sr(lo, n):
    return "s[%d:%d]" % (lo, lo + n - 1) if n > 1 else "s%d" % lo


S_X, S_K, S_V, S_WQ, S_WO, S_BX, S_W1, S_B1, S_W2, S_B2, S_OUT, S_DBG, S_WS = 4, 6, 8, 10, 12, 14, 16, 18, 20, 22, 24, 26, 28
S_WAVE, S_G, S_C = 30, 31, 3
SRD_WS, SRD_A, SRD_B, SRD_C = 32, 36, 40, 44
S_T0 = 52
S_PAIR = 72
S_CNT = 80
S_L = 81
S_SEL0, S_SEL1 = 82, 83
S_TS = 84
S_TSOFF = 86
S_A0, S_A1, S_A2, S_A3 = 87, 92, 93, 95
SRD_TS = 88
S_TAG = 94
S_CP = 100
S_CH = 101
V_TS = 31


def srd(dst, base, size, off_sgpr=None):
    if off_sgpr is None:
        a("s_mov_b32 s%d, s%d" % (dst, base))
        a("s_and_b32 s%d, s%d, 0xffff" % (dst + 1, base + 1))
    else:
        a("s_add_u32 s%d, s%d, s%d" % (dst, base, off_sgpr))
        a("s_addc_u32 s%d, s%d, 0" % (dst + 1, base + 1))
        a("s_and_b32 s%d, s%d, 0xffff" % (dst + 1, dst + 1))
    a("s_mov_b32 s%d, 0x%x" % (dst + 2, size))
    a("s_mov_b32 s%d, 0x00020000" % (dst + 3))


def stamp(idx, layered=False):
    if not DIAG:
        return
    a("s_memrealtime %s" % sr(S_TS, 2))
    if layered:
        a("s_cmp_lg_u32 s%d, 0x%x" % (S_L, BLK))
        a("s_cselect_b32 m0, %d, %d" % (idx + 8, idx))
        a("s_waitcnt lgkmcnt(0)")
        a("s_nop 3")
        a("v_writelane_b32 v%d, s%d, m0" % (V_TS, S_TS))
    else:
        a("s_waitcnt lgkmcnt(0)")
        a("v_writelane_b32 v%d, s%d, %d" % (V_TS, S_TS, idx))


def cnt_stamp(idx, layered=False):
    if not DIAG:
        return
    if layered:
        a("s_cmp_lg_u32 s%d, 0x%x" % (S_L, BLK))
        a("s_cselect_b32 m0, %d, %d" % (idx + 4, idx))
        a("s_nop 3")
        a("v_writelane_b32 v%d, s%d, m0" % (V_TS, S_CNT))
    else:
        a("v_writelane_b32 v%d, s%d, %d" % (V_TS, S_CNT, idx))


def stamp_init():
    if DIAG:
        a("v_mov_b32 v%d, 0x5a5a5a5a" % V_TS)


def stamp_flush():
    if not DIAG:
        return
    a("s_lshl_b32 s%d, s2, 11" % S_TSOFF)
    a("s_lshl_b32 s%d, s%d, 8" % (S_TS, S_WAVE))
    a("s_add_u32 s%d, s%d, s%d" % (S_TSOFF, S_TSOFF, S_TS))
    a("v_lshlrev_b32 v0, 2, v1")
    a("s_mov_b64 exec, -1")
    a("buffer_store_dword v%d, v0, %s, s%d offen" % (V_TS, sr(SRD_TS, 4), S_TSOFF))


def set_exec_lt(n):
    if n >= 64:
        a("s_mov_b64 exec, -1")
    elif n <= 32:
        a("s_mov_b32 exec_lo, 0x%x" % ((1 << n) - 1))
        a("s_mov_b32 exec_hi, 0")
    else:
        a("s_mov_b32 exec_lo, -1")
        a("s_mov_b32 exec_hi, 0x%x" % ((1 << (n - 32)) - 1))


def exec_all():
    a("s_mov_b64 exec, -1")


def sleep(n):
    while n > 0:
        a("s_sleep %d" % min(n, 64))
        n -= min(n, 64)


def bar(n=1):
    for _ in range(n):
        a("s_barrier")


def poll(loads, vtmp, delay=0, delay0=None, retry=None, retry0=None, cidx=None):
    if delay0 is not None and delay0 != delay:
        l1 = a.new("Ld1")
        l2 = a.new("Ld2")
        a("s_cmp_lg_u32 s%d, 0x%x" % (S_L, BLK))
        a("s_cbranch_scc1 %s" % l1)
        sleep(delay0)
        a("s_branch %s" % l2)
        a.lab(l1)
        sleep(delay)
        a.lab(l2)
    else:
        sleep(delay)
    a("s_mov_b32 s%d, 0" % S_CNT)
    top = a.new("Lpoll")
    done = a.new("Lpolld")
    a.lab(top)
    regs = []
    for (d, n, vo, so, imm) in loads:
        op = {1: "buffer_load_dword", 2: "buffer_load_dwordx2", 4: "buffer_load_dwordx4"}[n]
        a("%s %s, v%d, %s, %s offen offset:%d sc1" % (op, vr(d, n), vo, sr(SRD_WS, 4), so, imm))
        regs += list(range(d, d + n))
    a("s_waitcnt vmcnt(0)")
    cur = None
    i = 0
    while i < len(regs):
        if cur is None:
            if len(regs) - i >= 3:
                a("v_max3_u32 v%d, v%d, v%d, v%d" % (vtmp, regs[i], regs[i + 1], regs[i + 2]))
                i += 3
            elif len(regs) - i == 2:
                a("v_max_u32 v%d, v%d, v%d" % (vtmp, regs[i], regs[i + 1]))
                i += 2
            else:
                a("v_mov_b32 v%d, v%d" % (vtmp, regs[i]))
                i += 1
            cur = vtmp
        else:
            if len(regs) - i >= 2:
                a("v_max3_u32 v%d, v%d, v%d, v%d" % (vtmp, vtmp, regs[i], regs[i + 1]))
                i += 2
            else:
                a("v_max_u32 v%d, v%d, v%d" % (vtmp, vtmp, regs[i]))
                i += 1
    a("v_cmp_eq_u32 vcc, -1, v%d" % vtmp)
    a("s_add_u32 s%d, s%d, 1" % (S_CNT, S_CNT))
    a("s_cbranch_vccz %s" % done)
    if retry is None:
        retry = DLY["r"]
    if retry0 is not None and retry0 > retry:
        sleep(retry)
        lr = a.new("Lr")
        a("s_cmp_lg_u32 s%d, 0x%x" % (S_L, BLK))
        a("s_cbranch_scc1 %s" % lr)
        sleep(retry0 - retry)
        a.lab(lr)
    else:
        sleep(retry)
    a("s_cmp_lt_u32 s%d, 0x%x" % (S_CNT, POLL_LIMIT))
    a("s_cbranch_scc1 %s" % top)
    a.lab(done)
    if cidx is not None:
        cnt_stamp(cidx, True)


def dpp_steps(op, regs, steps):
    for st in steps:
        for r in regs:
            a("%s_dpp v%d, v%d, v%d %s" % (op, r, r, r, st))
        if len(regs) < 3:
            a("s_nop %d" % (2 - len(regs)))


ROR = ["row_ror:8 row_mask:0xf bank_mask:0xf", "row_ror:4 row_mask:0xf bank_mask:0xf",
       "row_ror:2 row_mask:0xf bank_mask:0xf", "row_ror:1 row_mask:0xf bank_mask:0xf"]
BC15 = "row_bcast:15 row_mask:0xa bank_mask:0xf"
BC31 = "row_bcast:31 row_mask:0xc bank_mask:0xf"


def dpp_reduce64(op, regs):
    dpp_steps(op, regs, ROR + [BC15, BC31])


def dpp_reduce_row(op, regs):
    dpp_steps(op, regs, ROR)


def dpp_reduce32(op, regs):
    dpp_steps(op, regs, ROR + [BC15])


LOG2E = 0x3fb8aa3b
INV448 = 0x3b124925
EPS = 0x3727c5ac


def layernorm(X, Y, F, D, T, vmaskf, vmaskb, mask_out):
    for i in range(4):
        a("v_lshlrev_b32 v%d, 16, v%d" % (F + 2 * i, X + i))
        a("v_and_b32 v%d, 0xffff0000, v%d" % (F + 2 * i + 1, X + i))
    a("v_readlane_b32 s%d, v%d, 0" % (S_T0, F))
    a("s_nop 0")
    a("s_mov_b32 s%d, s%d" % (S_T0 + 1, S_T0))
    a("s_nop 0")
    for i in range(4):
        a("v_pk_add_f32 %s, %s, %s neg_lo:[0,1] neg_hi:[0,1]" % (vr(D + 2 * i, 2), vr(F + 2 * i, 2), sr(S_T0, 2)))
    a("v_pk_add_f32 %s, %s, %s" % (vr(T, 2), vr(D, 2), vr(D + 2, 2)))
    a("v_pk_mul_f32 %s, %s, %s" % (vr(T + 2, 2), vr(D, 2), vr(D, 2)))
    a("v_pk_add_f32 %s, %s, %s" % (vr(T + 4, 2), vr(D + 4, 2), vr(D + 6, 2)))
    a("v_pk_fma_f32 %s, %s, %s, %s" % (vr(T + 2, 2), vr(D + 2, 2), vr(D + 2, 2), vr(T + 2, 2)))
    a("v_pk_add_f32 %s, %s, %s" % (vr(T, 2), vr(T, 2), vr(T + 4, 2)))
    a("v_pk_fma_f32 %s, %s, %s, %s" % (vr(T + 2, 2), vr(D + 4, 2), vr(D + 4, 2), vr(T + 2, 2)))
    a("v_add_f32 v%d, v%d, v%d" % (T, T, T + 1))
    a("v_pk_fma_f32 %s, %s, %s, %s" % (vr(T + 2, 2), vr(D + 6, 2), vr(D + 6, 2), vr(T + 2, 2)))
    a("v_mul_f32 v%d, v%d, v%d" % (T, T, vmaskf))
    a("v_add_f32 v%d, v%d, v%d" % (T + 1, T + 2, T + 3))
    a("v_mul_f32 v%d, v%d, v%d" % (T + 1, T + 1, vmaskf))
    a("s_nop 1")
    dpp_reduce64("v_add_f32", [T, T + 1])
    a("v_readlane_b32 s%d, v%d, 63" % (S_T0 + 2, T))
    a("v_readlane_b32 s%d, v%d, 63" % (S_T0 + 3, T + 1))
    a("v_mov_b32 v%d, 0x%x" % (T + 2, INV448))
    a("s_nop 0")
    a("v_mul_f32 v%d, s%d, v%d" % (T, S_T0 + 2, T + 2))
    a("v_mul_f32 v%d, s%d, v%d" % (T + 1, S_T0 + 3, T + 2))
    a("v_fma_f32 v%d, -v%d, v%d, v%d" % (T + 1, T, T, T + 1))
    a("v_add_f32 v%d, s%d, v%d" % (T, S_T0, T))
    a("v_max_f32 v%d, 0, v%d" % (T + 1, T + 1))
    a("v_cvt_pk_bf16_f32 v%d, v%d, v%d" % (T + 3, T, T + 1))
    a("v_lshlrev_b32 v%d, 16, v%d" % (T, T + 3))
    a("v_and_b32 v%d, 0xffff0000, v%d" % (T + 2, T + 3))
    a("v_add_f32 v%d, 0x%x, v%d" % (T + 2, EPS, T + 2))
    for i in range(4):
        a("v_pk_add_f32 %s, %s, %s op_sel_hi:[1,0] neg_lo:[0,1] neg_hi:[0,1]" % (vr(D + 2 * i, 2), vr(F + 2 * i, 2), vr(T, 2)))
    a("v_cvt_pk_bf16_f32 v%d, v%d, v%d" % (T + 2, T + 2, T + 2))
    a("v_cvt_pk_bf16_f32 v%d, v%d, v%d" % (F, D, D + 1))
    a("v_and_b32 v%d, 0xffff0000, v%d" % (T + 2, T + 2))
    a("v_cvt_pk_bf16_f32 v%d, v%d, v%d" % (F + 1, D + 2, D + 3))
    a("v_sqrt_f32 v%d, v%d" % (T + 2, T + 2))
    a("v_cvt_pk_bf16_f32 v%d, v%d, v%d" % (F + 2, D + 4, D + 5))
    a("v_cvt_pk_bf16_f32 v%d, v%d, v%d" % (F + 3, D + 6, D + 7))
    a("v_cvt_pk_bf16_f32 v%d, v%d, v%d" % (T + 2, T + 2, T + 2))
    for i in range(2):
        a("v_lshlrev_b32 v%d, 16, v%d" % (D + 2 * i, F + i))
        a("v_and_b32 v%d, 0xffff0000, v%d" % (D + 2 * i + 1, F + i))
    a("v_and_b32 v%d, 0xffff0000, v%d" % (T + 2, T + 2))
    for i in range(2, 4):
        a("v_lshlrev_b32 v%d, 16, v%d" % (D + 2 * i, F + i))
        a("v_and_b32 v%d, 0xffff0000, v%d" % (D + 2 * i + 1, F + i))
    a("v_rcp_f32 v%d, v%d" % (T + 2, T + 2))
    a("s_nop 0")
    for i in range(4):
        a("v_pk_mul_f32 %s, %s, %s op_sel_hi:[1,0]" % (vr(D + 2 * i, 2), vr(D + 2 * i, 2), vr(T + 2, 2)))
    for i in range(4):
        a("v_cvt_pk_bf16_f32 v%d, v%d, v%d" % (Y + i, D + 2 * i, D + 2 * i + 1))
    if mask_out:
        for i in range(4):
            a("v_and_b32 v%d, v%d, v%d" % (Y + i, Y + i, vmaskb))


def gemv16(Yp, ylds, vaddr_w, vaddr_r, AF, BF, D):
    a("ds_write_b128 v%d, %s offset:%d" % (vaddr_w, vr(Yp, 4), ylds))
    a("s_waitcnt lgkmcnt(0)")
    for s in range(14):
        a("ds_read_b128 %s, v%d offset:%d" % (vr(AF + 4 * s, 4), vaddr_r, ylds + 64 * s))
    for s in range(14):
        a("s_waitcnt lgkmcnt(%d)" % (13 - s))
        a("v_mfma_f32_16x16x32_bf16 %s, %s, %s, %s" % (vr(D, 4), vr(AF + 4 * s, 4), vr(BF + 4 * s, 4), "0" if s == 0 else vr(D, 4)))
    a("s_nop 7")
    a("s_nop 1")


a.l.append("; @launch grid=(256,1,1) block=(512,1,1) lds=%d" % LDS_SIZE)
a.l.append('.amdgcn_target "amdgcn-amd-amdhsa--gfx950"')
a.l.append(".text")
a.l.append(".globl %s_kernel" % NAME)
a.l.append(".p2align 8")
a.l.append(".type %s_kernel,@function" % NAME)
a.lab("%s_kernel" % NAME)
a("s_cmp_ge_u32 s2, 256")
a("s_cbranch_scc1 L_end")
a("s_load_dwordx16 s[4:19], s[0:1], 0")
a("s_load_dwordx8 s[20:27], s[0:1], 64")
a("s_load_dwordx2 s[28:29], s[0:1], 96")
a("v_and_b32 v1, 63, v0")
a("v_lshrrev_b32 v2, 6, v0")
a("s_and_b32 s%d, s2, 7" % S_G)
a("v_readfirstlane_b32 s%d, v2" % S_WAVE)
a("s_lshr_b32 s%d, s2, 3" % S_C)
a("s_cmp_ge_u32 s%d, 28" % S_C)
a("s_cselect_b32 s%d, 28, 0" % S_T0)
a("s_sub_u32 s%d, s%d, s%d" % (S_CH, S_C, S_T0))
a("s_cmp_ge_u32 s%d, 14" % S_CH)
a("s_cselect_b32 s%d, 14, 0" % S_T0)
a("s_sub_u32 s%d, s%d, s%d" % (S_CP, S_CH, S_T0))
a("s_mov_b32 s%d, 0x05040100" % S_SEL0)
a("s_mov_b32 s%d, 0x07060302" % S_SEL1)
a("s_mov_b32 s%d, 0x%x" % (S_L, BLK))
a("s_waitcnt lgkmcnt(0)")
srd(SRD_WS, S_WS, WS_SIZE)
if DIAG:
    a("s_add_u32 s%d, s%d, 0x%x" % (SRD_TS, S_WS, TS_BASE))
    a("s_addc_u32 s%d, s%d, 0" % (SRD_TS + 1, S_WS + 1))
    a("s_and_b32 s%d, s%d, 0xffff" % (SRD_TS + 1, SRD_TS + 1))
    a("s_mov_b32 s%d, 0x80000" % (SRD_TS + 2))
    a("s_mov_b32 s%d, 0x00020000" % (SRD_TS + 3))
a("s_cmp_ge_u32 s%d, 4" % S_WAVE)
a("s_cbranch_scc1 L_G")

KF, VF, QF, ACC, PF, SC = 64, 128, 192, 192, 32, 16
V_OK0, V_OK1, V_OV, V_VW, V_VR, V_QR, V_PR, V_PW, V_L4, V_Z, V_STW = 2, 3, 4, 5, 6, 7, 8, 9, 10, 11, 24
stamp_init()
stamp(0)
a("s_lshl_b32 s%d, s%d, 25" % (S_T0, S_G))
a("s_lshl_b32 s%d, s%d, 16" % (S_T0 + 1, S_C))
a("s_add_u32 s%d, s%d, s%d" % (S_T0, S_T0, S_T0 + 1))
a("s_lshl_b32 s%d, s%d, 14" % (S_T0 + 1, S_WAVE))
a("s_add_u32 s%d, s%d, s%d" % (S_T0, S_T0, S_T0 + 1))
a("s_add_u32 s%d, s%d, %d" % (S_T0, S_T0, 61440 * 512))
srd(SRD_A, S_K, 16384, S_T0)
srd(SRD_B, S_V, 16384, S_T0)
a("v_and_b32 v12, 15, v1")
a("v_lshrrev_b32 v13, 4, v1")
a("v_lshlrev_b32 v%d, 9, v12" % V_OK0)
a("v_lshl_add_u32 v%d, v13, 4, v%d" % (V_OK0, V_OK0))
a("v_add_u32 v%d, 8192, v%d" % (V_OK1, V_OK0))
a("v_lshlrev_b32 v%d, 4, v1" % V_OV)
for j in range(1, 4):
    a("s_mov_b32 s%d, %d" % (S_T0 + 4 + j, 4096 * j))
bar()
for kb in range(2):
    for s in range(8):
        a("buffer_load_dwordx4 %s, v%d, %s, 0 offen offset:%d nt" % (vr(KF + kb * 32 + s * 4, 4), V_OK0 if kb == 0 else V_OK1, sr(SRD_A, 4), s * 64))
for i in range(16):
    so = "0" if i < 4 else "s%d" % (S_T0 + 4 + i // 4)
    a("buffer_load_dwordx4 %s, v%d, %s, %s offen offset:%d nt" % (vr(VF + i * 4, 4), V_OV, sr(SRD_B, 4), so, (i % 4) * 1024))
a("v_lshrrev_b32 v14, 5, v1")
a("v_mul_u32_u24 v14, %d, v14" % VROW)
a("v_and_b32 v15, 31, v1")
a("v_lshl_add_u32 v%d, v15, 4, v14" % V_VW)
a("s_mul_i32 s%d, s%d, %d" % (S_T0, S_WAVE, 32 * VROW))
a("s_add_u32 s%d, s%d, %d" % (S_T0, S_T0, VSTB))
a("v_add_u32 v%d, s%d, v%d" % (V_VW, S_T0, V_VW))
a("v_lshrrev_b32 v14, 2, v12")
a("v_lshl_add_u32 v14, v13, 3, v14")
a("v_mul_u32_u24 v14, %d, v14" % VROW)
a("v_and_b32 v15, 3, v12")
a("v_lshl_add_u32 v%d, v15, 3, v14" % V_VR)
a("s_lshl_b32 s%d, s%d, 7" % (S_T0, S_WAVE))
a("s_add_u32 s%d, s%d, %d" % (S_T0, S_T0, VSTB))
a("v_add_u32 v%d, s%d, v%d" % (V_VR, S_T0, V_VR))
a("v_min_u32 v14, 2, v12")
a("v_lshlrev_b32 v15, 9, v14")
a("v_lshl_add_u32 v%d, v13, 4, v15" % V_QR)
a("v_lshlrev_b32 v15, 8, v14")
a("v_lshl_add_u32 v%d, v13, 4, v15" % V_PR)
a("s_lshl_b32 s%d, s%d, 6" % (S_T0, S_WAVE))
a("v_lshl_add_u32 v%d, v1, 1, s%d" % (V_PW, S_T0))
a("v_lshlrev_b32 v%d, 2, v1" % V_L4)
a("v_mov_b32 v%d, 0" % V_Z)
a("s_lshl_b32 s%d, s%d, 4" % (S_T0, S_WAVE))
a("v_mov_b32 v%d, s%d" % (V_STW, S_T0))
a("s_lshl_b32 s%d, s%d, 16" % (S_A0, S_G))
a("s_lshl_b32 s%d, s%d, 13" % (S_T0 + 1, S_WAVE))
a("s_add_u32 s%d, s%d, s%d" % (S_A0, S_A0, S_T0 + 1))
a("s_lshl_b32 s%d, s%d, 6" % (S_T0 + 1, S_C))
a("s_add_u32 s%d, s%d, s%d" % (S_A0, S_A0, S_T0 + 1))
a("s_lshl_b32 s%d, s%d, 9" % (S_A1, S_G))
a("s_lshl_b32 s%d, s%d, 3" % (S_T0 + 1, S_C))
a("s_add_u32 s%d, s%d, s%d" % (S_A1, S_A1, S_T0 + 1))
a("s_add_u32 s%d, s%d, 0x%x" % (S_A1, S_A1, oML))
stamp(7)

a.lab("L_Aloop")
bar()
stamp(1, True)
for s in range(8):
    a("ds_read_b128 %s, v%d offset:%d" % (vr(QF + 4 * s, 4), V_QR, QL + 64 * s))
a("s_waitcnt vmcnt(16)")
for s in range(8):
    a("s_waitcnt lgkmcnt(%d)" % (7 - s))
    for kb in range(2):
        a("v_mfma_f32_16x16x32_bf16 %s, %s, %s, %s" % (vr(SC + 4 * kb, 4), vr(QF + 4 * s, 4), vr(KF + kb * 32 + 4 * s, 4), "0" if s == 0 else vr(SC + 4 * kb, 4)))
a("s_add_u32 s%d, s%d, s%d" % (S_T0, S_A0, S_L))
a("s_add_u32 s%d, s%d, 4096" % (S_T0 + 1, S_T0))
a("s_add_u32 s%d, s%d, 32768" % (S_T0 + 2, S_T0))
a("s_add_u32 s%d, s%d, 36864" % (S_T0 + 3, S_T0))
a("s_add_u32 s%d, s%d, s%d" % (S_T0 + 4, S_A1, S_L))
a("s_nop 5")
a("v_cvt_pk_bf16_f32 v48, v16, v17")
a("v_cvt_pk_bf16_f32 v49, v20, v21")
a("v_lshlrev_b32 v50, 16, v48")
a("v_and_b32 v51, 0xffff0000, v48")
a("v_lshlrev_b32 v52, 16, v49")
a("v_and_b32 v53, 0xffff0000, v49")
a("v_max_f32 v54, v50, v52")
a("v_max_f32 v55, v51, v53")
a("s_nop 1")
dpp_reduce_row("v_max_f32", [54, 55])
a("v_mov_b32 v56, 0x3db8aa3b")
a("v_sub_f32 v50, v50, v54")
a("v_sub_f32 v52, v52, v54")
a("v_sub_f32 v51, v51, v55")
a("v_sub_f32 v53, v53, v55")
for r in range(50, 54):
    a("v_mul_f32 v%d, v56, v%d" % (r, r))
for r in range(50, 54):
    a("v_exp_f32 v%d, v%d" % (r, r))
a("v_mul_f32 v56, 0x3d800000, v54")
a("v_mul_f32 v58, 0x3d800000, v55")
a("v_add_f32 v57, v50, v52")
a("v_add_f32 v59, v51, v53")
a("v_cvt_pk_bf16_f32 v48, v50, v51")
a("v_cvt_pk_bf16_f32 v49, v52, v53")
set_exec_lt(16)
a("ds_write_b16 v%d, v48 offset:%d" % (V_PW, PL))
a("ds_write_b16_d16_hi v%d, v48 offset:%d" % (V_PW, PL + 256))
a("ds_write_b16 v%d, v49 offset:%d" % (V_PW, PL + 32))
a("ds_write_b16_d16_hi v%d, v49 offset:%d" % (V_PW, PL + 256 + 32))
exec_all()
dpp_reduce_row("v_add_f32", [57, 59])
set_exec_lt(1)
a("ds_write_b128 v%d, v[56:59] offset:%d" % (V_STW, ST))
exec_all()
stamp(3, True)
a("s_cmp_lg_u32 s%d, 0x%x" % (S_L, BLK))
a("s_cbranch_scc1 L_Anostage")
for i in range(16):
    a("s_waitcnt vmcnt(%d)" % (15 - i))
    a("ds_write_b128 v%d, %s offset:%d" % (V_VW, vr(VF + 4 * i, 4), i * 2 * VROW))
a.lab("L_Anostage")
a("s_waitcnt lgkmcnt(0)")
stamp(4, True)
bar()
stamp(5, True)
a("s_cmp_lg_u32 s%d, 0x%x" % (S_L, BLK))
a("s_cbranch_scc1 L_Anotr")
for s in range(4):
    for b in range(4):
        for hf in range(2):
            a("ds_read_b64_tr_b16 %s, v%d offset:%d" % (vr(VF + (s * 4 + b) * 4 + hf * 2, 2), V_VR, s * 32 * VROW + hf * 4 * VROW + b * 32))
a.lab("L_Anotr")
for s in range(4):
    a("ds_read_b128 %s, v%d offset:%d" % (vr(PF + 4 * s, 4), V_PR, PL + 64 * s))
for w in range(4):
    a("ds_read_b128 %s, v%d offset:%d" % (vr(48 + 4 * w, 4), V_Z, ST + 16 * w))
a("s_waitcnt lgkmcnt(4)")
for s in range(4):
    for b in range(4):
        a("v_mfma_f32_16x16x32_bf16 %s, %s, %s, 0" % (vr(ACC + (s * 4 + b) * 4, 4), vr(PF + 4 * s, 4), vr(VF + (s * 4 + b) * 4, 4)))
    if s == 0:
        a("s_waitcnt lgkmcnt(0)")
        a("v_max3_f32 v16, v48, v52, v56")
        a("v_max3_f32 v18, v50, v54, v58")
        a("v_max_f32 v16, v16, v60")
        a("v_max_f32 v18, v18, v62")
        for w in range(4):
            a("v_sub_f32 v%d, v%d, v16" % (48 + 4 * w, 48 + 4 * w))
            a("v_sub_f32 v%d, v%d, v18" % (50 + 4 * w, 50 + 4 * w))
    if s == 1:
        for w in range(4):
            a("v_mul_f32 v%d, 0x%x, v%d" % (48 + 4 * w, LOG2E, 48 + 4 * w))
            a("v_mul_f32 v%d, 0x%x, v%d" % (50 + 4 * w, LOG2E, 50 + 4 * w))
        for w in range(4):
            a("v_exp_f32 v%d, v%d" % (48 + 4 * w, 48 + 4 * w))
            a("v_exp_f32 v%d, v%d" % (50 + 4 * w, 50 + 4 * w))
    if s == 2:
        a("v_mul_f32 v17, v48, v49")
        a("v_mul_f32 v19, v50, v51")
        for w in range(1, 4):
            a("v_fmac_f32 v17, v%d, v%d" % (48 + 4 * w, 49 + 4 * w))
            a("v_fmac_f32 v19, v%d, v%d" % (50 + 4 * w, 51 + 4 * w))
        for b in range(4):
            for h in range(2):
                a("v_mul_f32 v%d, v%d, v%d" % (20 + b * 2 + h, 48 + 2 * h, ACC + b * 4 + h))
for b in range(4):
    for h in range(2):
        a("v_fmac_f32 v%d, v%d, v%d" % (20 + b * 2 + h, 48 + 4 + 2 * h, ACC + (4 + b) * 4 + h))
for b in range(4):
    for h in range(2):
        a("v_fmac_f32 v%d, v%d, v%d" % (20 + b * 2 + h, 48 + 8 + 2 * h, ACC + (8 + b) * 4 + h))
a("s_nop 1")
for b in range(4):
    for h in range(2):
        a("v_fmac_f32 v%d, v%d, v%d" % (20 + b * 2 + h, 48 + 12 + 2 * h, ACC + (12 + b) * 4 + h))
set_exec_lt(16)
for h in range(2):
    for b in range(4):
        a("buffer_store_dword v%d, v%d, %s, s%d offen offset:%d sc1" % (20 + b * 2 + h, V_L4, sr(SRD_WS, 4), S_T0 + 2 * h + b // 2, (b % 2) * 2048))
a("s_cmp_lg_u32 s%d, 0" % S_WAVE)
a("s_cbranch_scc1 L_Askipml")
set_exec_lt(1)
a("buffer_store_dwordx2 v[16:17], v%d, %s, s%d offen sc1" % (V_Z, sr(SRD_WS, 4), S_T0 + 4))
a("buffer_store_dwordx2 v[18:19], v%d, %s, s%d offen offset:256 sc1" % (V_Z, sr(SRD_WS, 4), S_T0 + 4))
a.lab("L_Askipml")
exec_all()
a("v_mov_b32 v%d, s%d" % (V_STW, S_WAVE))
a("v_lshlrev_b32 v%d, 4, v%d" % (V_STW, V_STW))
stamp(6, True)
bar()
a("s_cmp_lg_u32 s%d, 0x%x" % (S_L, BLK))
a("s_cbranch_scc1 L_Aend")
bar(5)
a("s_add_u32 s%d, s%d, 0x%x" % (S_L, S_L, LS))
a("s_branch L_Aloop")
a.lab("L_Aend")
stamp_flush()
a("s_endpgm")

a.lab("L_G")
V_TS = 63
if DLY["prio"]:
    a("s_setprio %d" % DLY["prio"])
stamp_init()
stamp(0)
BF = 64
RAW = 128
PW = 192
XP, YP = 16, 20
FT, DT, TT = 24, 32, 40
DD = 48
GA = 48
V_MF, V_MB, V_L16, V_AR, V_TR, V_PAIR, V_ZERO, V_T = 2, 3, 4, 5, 6, 7, 8, 9
V_O1, V_O2, V_B1, V_TAG = 10, 11, 12, 62
a("v_cmp_gt_u32 vcc, 56, v1")
a("v_mov_b32 v%d, 0" % V_ZERO)
a("v_lshlrev_b32 v%d, 4, v1" % V_L16)
a("v_cndmask_b32 v%d, 0, 1.0, vcc" % V_MF)
a("v_cndmask_b32 v%d, 0, -1, vcc" % V_MB)
a("v_lshrrev_b32 v%d, 4, v1" % V_T)
a("v_lshlrev_b32 v%d, 4, v%d" % (V_AR, V_T))
a("v_and_b32 v32, 15, v1")
a("v_lshrrev_b32 v33, 2, v32")
a("v_lshl_add_u32 v33, v%d, 3, v33" % V_T)
a("v_lshlrev_b32 v33, 5, v33")
a("v_and_b32 v34, 3, v32")
a("v_lshl_add_u32 v%d, v34, 3, v33" % V_TR)
a("v_lshrrev_b32 v%d, 1, v1" % V_PAIR)
a("v_lshlrev_b32 v%d, 2, v%d" % (V_PAIR, V_PAIR))
for i in range(4):
    a("v_mov_b32 v%d, 0" % (XP + i))
a("s_cmp_eq_u32 s%d, 4" % S_WAVE)
a("s_cbranch_scc1 L_G0")
a("s_cmp_eq_u32 s%d, 5" % S_WAVE)
a("s_cbranch_scc1 L_G1")
a("s_cmp_eq_u32 s%d, 6" % S_WAVE)
a("s_cbranch_scc1 L_G2")
a("s_branch L_G3")


def tr_frags(lds_base):
    a("s_waitcnt lgkmcnt(0)")
    for s in range(14):
        for hf in range(2):
            a("ds_read_b64_tr_b16 %s, v%d offset:%d" % (vr(BF + 4 * s + 2 * hf, 2), V_TR, lds_base + s * 1024 + hf * 128))
    a("s_waitcnt lgkmcnt(0)")


def load_rows(srd_lo, base_ptr, row0_sgpr, nrows):
    a("s_mul_i32 s%d, s%d, 896" % (S_T0, row0_sgpr))
    srd(srd_lo, base_ptr, nrows * 896, S_T0)
    for i in range(nrows // 4):
        a("s_mov_b32 s%d, %d" % (S_T0 + 1 + i, i * 4 * 896))
    set_exec_lt(56)
    for r in range(nrows):
        a("buffer_load_dwordx4 %s, v%d, %s, s%d offen offset:%d nt" % (vr(RAW + 4 * r, 4), V_L16, sr(srd_lo, 4), S_T0 + 1 + r // 4, (r % 4) * 896))
    exec_all()


def perm_rows(nrows):
    for i in range(nrows // 2):
        for d in range(4):
            lo = RAW + 4 * (2 * i) + d
            hi = RAW + 4 * (2 * i + 1) + d
            a("v_perm_b32 v%d, v%d, v%d, s%d" % (PW + i * 8 + 2 * d, hi, lo, S_SEL0))
            a("v_perm_b32 v%d, v%d, v%d, s%d" % (PW + i * 8 + 2 * d + 1, hi, lo, S_SEL1))


def part_gemv(acc, npairs):
    for i in range(npairs):
        for col in range(8):
            if i == 0:
                a("v_dot2_f32_bf16 v%d, v%d, s%d, 0" % (acc + col, PW + col, S_PAIR))
            else:
                a("v_dot2_f32_bf16 v%d, v%d, s%d, v%d" % (acc + col, PW + i * 8 + col, S_PAIR + i, acc + col))
    a("s_nop 2")


def tag_issue():
    a("s_mov_b32 s%d, 0x%x" % (S_T0, EPOCH))
    a("buffer_load_dword v%d, v%d, %s, s%d offen sc1" % (V_TAG, V_ZERO, sr(SRD_WS, 4), S_T0))


def tag_finish(wait=True):
    if wait:
        a("s_waitcnt vmcnt(0)")
    a("v_readfirstlane_b32 s%d, v%d" % (S_TAG, V_TAG))
    a("s_add_u32 s%d, s%d, 0x9e3779b9" % (S_TAG, S_TAG))


a.lab("L_G0")
srd(SRD_B, S_X, 896)
a("buffer_load_dwordx4 %s, v%d, %s, 0 offen" % (vr(XP, 4), V_L16, sr(SRD_B, 4)))
tag_issue()
a("s_lshl_b32 s%d, s%d, 10" % (S_A0, S_G))
a("s_lshl_b32 s%d, s%d, 5" % (S_T0 + 1, S_C))
a("s_add_u32 s%d, s%d, s%d" % (S_A0, S_A0, S_T0 + 1))
srd(SRD_A, S_WQ, 448 * 8192, S_A0)
a("s_sub_u32 s%d, s%d, s%d" % (SRD_A + 2, SRD_A + 2, S_A0))
a("v_lshrrev_b32 v32, 1, v1")
a("v_lshlrev_b32 v32, 13, v32")
a("v_and_b32 v33, 1, v1")
a("v_lshl_add_u32 v32, v33, 4, v32")
for i in range(14):
    a("s_mov_b32 s%d, %d" % (S_T0 + 2 + i, i * 32 * 8192))
for i in range(14):
    a("buffer_load_dwordx4 %s, v32, %s, s%d offen nt" % (vr(BF + 4 * i, 4), sr(SRD_A, 4), S_T0 + 2 + i))
bar()
for i in range(14):
    a("s_waitcnt vmcnt(%d)" % (13 - i))
    a("ds_write_b128 v%d, %s offset:%d" % (V_L16, vr(BF + 4 * i, 4), WQS + 1024 * i))
tr_frags(WQS)
tag_finish(False)
a("v_lshlrev_b32 v%d, 1, v%d" % (V_O1, V_PAIR))
stamp(1)
a.lab("L_G0loop")
layernorm(XP, YP, FT, DT, TT, V_MF, V_MB, False)
gemv16(YP, YL, V_L16, V_AR, RAW, BF, DD)
a("v_mov_b32_dpp v%d, v%d quad_perm:[1,0,3,2] row_mask:0xf bank_mask:0xf" % (TT, DD))
a("v_mov_b32 v%d, s%d" % (TT + 1, S_TAG))
a("v_cvt_pk_bf16_f32 v%d, v%d, v%d" % (TT, DD, TT))
a("s_mov_b32 exec_lo, 0x5555")
a("s_mov_b32 exec_hi, 0")
a("s_cmp_lg_u32 s%d, 0x%x" % (S_L, BLK))
a("s_cbranch_scc1 L_G0second")
a("s_lshl_b32 s%d, s%d, 1" % (S_T0, S_A0))
a("buffer_store_dwordx2 v[%d:%d], v%d, %s, s%d offen sc1" % (TT, TT + 1, V_O1, sr(SRD_WS, 4), S_T0))
exec_all()
stamp(2)
if DLY["chk"]:
    sleep(DLY["chk"])
else:
    bar()
a("v_lshlrev_b32 v%d, 5, v1" % TT)
a("s_mov_b32 s%d, 0" % S_CNT)
a("s_mov_b32 s%d, 0x%x" % (S_T0 + 1, DONE))
a.lab("L_flagpoll")
a("buffer_load_dwordx4 v[48:51], v%d, %s, s%d offen sc1" % (TT, sr(SRD_WS, 4), S_T0 + 1))
a("buffer_load_dwordx4 v[52:55], v%d, %s, s%d offen offset:16 sc1" % (TT, sr(SRD_WS, 4), S_T0 + 1))
a("s_waitcnt vmcnt(0)")
for r in range(48, 56):
    a("v_xor_b32 v%d, s%d, v%d" % (r, S_TAG, r))
a("v_or3_b32 v48, v48, v49, v50")
a("v_or3_b32 v51, v51, v52, v53")
a("v_or3_b32 v48, v48, v54, v55")
a("v_or_b32 v48, v48, v51")
a("v_cmp_ne_u32 vcc, 0, v48")
a("s_add_u32 s%d, s%d, 1" % (S_CNT, S_CNT))
a("s_cbranch_vccz L_flagdone")
sleep(DLY["fr"])
a("s_cmp_lt_u32 s%d, 0x%x" % (S_CNT, POLL_LIMIT))
a("s_cbranch_scc1 L_flagpoll")
a.lab("L_flagdone")
cnt_stamp(47)
stamp(3)
if DLY["chk"]:
    bar()
bar(6)
a("s_add_u32 s%d, s%d, 0x%x" % (S_T0 + 8, S_L, oXN))
set_exec_lt(56)
poll([(XP, 4, V_L16, "s%d" % (S_T0 + 8), 0)], TT, DLY["x2"], cidx=48)
exec_all()
stamp(4)
a("s_add_u32 s%d, s%d, 0x%x" % (S_L, S_L, LS))
a("s_branch L_G0loop")
a.lab("L_G0second")
a("s_add_u32 s%d, s%d, 0x%x" % (S_T0, S_A0, BLK + oQN))
a("buffer_store_dword v%d, v%d, %s, s%d offen sc1" % (TT, V_PAIR, sr(SRD_WS, 4), S_T0))
exec_all()
stamp(5)
bar()
stamp_flush()
a("s_endpgm")

a.lab("L_G1")
bar()
a("s_setprio 0")
sleep(DLY["wdly"])
a("s_mul_i32 s%d, s%d, 224" % (S_A0, S_G))
a("s_lshl_b32 s%d, s%d, 3" % (S_T0 + 1, S_CH))
a("s_add_u32 s%d, s%d, s%d" % (S_A0, S_A0, S_T0 + 1))
srd(SRD_B, S_B1, 3584)
a("v_lshlrev_b32 v%d, 1, v1" % TT)
a("s_lshl_b32 s%d, s%d, 1" % (S_A1, S_A0))
a("buffer_load_ushort v%d, v%d, %s, s%d offen" % (V_B1, TT, sr(SRD_B, 4), S_A1))
srd(SRD_A, S_W1, 448 * 3584, S_A1)
a("s_sub_u32 s%d, s%d, s%d" % (SRD_A + 2, SRD_A + 2, S_A1))
a("s_mov_b32 s%d, 3584" % (S_T0 + 1))
a("v_mul_lo_u32 v32, v1, s%d" % (S_T0 + 1))
a("s_cmp_ge_u32 s%d, 28" % S_C)
a("s_cbranch_scc1 L_G1skipw")
for i in range(7):
    a("s_mov_b32 s%d, %d" % (S_T0 + 2 + i, i * 64 * 3584))
for i in range(7):
    a("buffer_load_dwordx4 %s, v32, %s, s%d offen nt" % (vr(BF + 4 * i, 4), sr(SRD_A, 4), S_T0 + 2 + i))
load_rows(SRD_C, S_W2, S_A0, 8)
a.lab("L_G1skipw")
a("s_setprio %d" % DLY["prio"])
bar(4)
a("s_waitcnt vmcnt(0)")
a("v_lshlrev_b32 v%d, 5, v1" % TT)
for i in range(7):
    a("ds_write_b128 v%d, %s offset:%d" % (TT, vr(BF + 4 * i, 4), W1S + 2048 * i))
tr_frags(W1S)
perm_rows(8)
a("v_lshlrev_b32 v%d, 16, v%d" % (V_B1, V_B1))
a("v_lshlrev_b32 v%d, 13, v1" % V_O1)
a("v_add_u32 v%d, 4096, v%d" % (V_O2, V_O1))
a("s_mul_i32 s%d, s%d, 28" % (S_A2, S_G))
a("s_add_u32 s%d, s%d, s%d" % (S_A2, S_A2, S_CH))
a("s_lshl_b32 s%d, s%d, 4" % (S_A2, S_A2))
a("s_add_u32 s%d, s%d, 0x%x" % (S_A2, S_A2, oR2))
a.lab("L_G1loop")
bar()
a("s_add_u32 s%d, s%d, 0x%x" % (S_T0 + 8, S_L, oX1))
set_exec_lt(56)
poll([(XP, 4, V_L16, "s%d" % (S_T0 + 8), 0)], TT, DLY["x1"], cidx=48)
exec_all()
stamp(1, True)
layernorm(XP, YP, FT, DT, TT, V_MF, V_MB, True)
layernorm(YP, XP, FT, DT, TT, V_MF, V_MB, True)
gemv16(XP, YL2, V_L16, V_AR, RAW, BF, DD)
a("v_cvt_pk_bf16_f32 v%d, v%d, v%d" % (TT, DD, DD))
a("v_and_b32 v%d, 0xffff0000, v%d" % (TT, TT))
a("v_add_f32 v%d, v%d, v%d" % (TT, TT, V_B1))
a("v_cvt_pk_bf16_f32 v%d, v%d, v%d" % (TT, TT, TT))
a("v_and_b32 v%d, 0xffff0000, v%d" % (TT, TT))
a("v_mul_f32 v%d, v%d, v%d" % (TT + 1, TT, TT))
a("v_mov_b32 v%d, 0xc0135761" % (TT + 2))
a("v_fmac_f32 v%d, 0xbdd2d3e8, v%d" % (TT + 2, TT + 1))
a("v_mul_f32 v%d, v%d, v%d" % (TT + 2, TT + 2, TT))
a("v_exp_f32 v%d, v%d" % (TT + 2, TT + 2))
a("s_add_u32 s%d, s%d, s%d" % (S_T0, S_A2, S_L))
a("v_add_f32 v%d, 1.0, v%d" % (TT + 2, TT + 2))
a("v_rcp_f32 v%d, v%d" % (TT + 2, TT + 2))
a("s_nop 0")
a("v_mul_f32 v%d, v%d, v%d" % (TT + 3, TT, TT + 2))
a("s_nop 1")
a("v_mov_b32_dpp v%d, v%d quad_perm:[1,0,3,2] row_mask:0xf bank_mask:0xf" % (TT + 4, TT + 3))
a("s_nop 0")
a("v_cvt_pk_bf16_f32 v%d, v%d, v%d" % (TT + 4, TT + 3, TT + 4))
a("s_nop 0")
for i in range(4):
    a("v_readlane_b32 s%d, v%d, %d" % (S_PAIR + i, TT + 4, 2 * i))
a("s_nop 1")
part_gemv(GA, 4)
a("s_cmp_ge_u32 s%d, 28" % S_C)
a("s_cbranch_scc1 L_G1skipst")
set_exec_lt(56)
a("buffer_store_dwordx4 %s, v%d, %s, s%d offen sc1" % (vr(GA, 4), V_O1, sr(SRD_WS, 4), S_T0))
a("buffer_store_dwordx4 %s, v%d, %s, s%d offen sc1" % (vr(GA + 4, 4), V_O2, sr(SRD_WS, 4), S_T0))
exec_all()
a.lab("L_G1skipst")
stamp(2, True)
bar()
a("s_cmp_lg_u32 s%d, 0x%x" % (S_L, BLK))
a("s_cbranch_scc1 L_G1end")
bar(6)
a("s_add_u32 s%d, s%d, 0x%x" % (S_L, S_L, LS))
a("s_branch L_G1loop")
a.lab("L_G1end")
stamp_flush()
a("s_endpgm")

a.lab("L_G2")
for i in range(4):
    a("v_mov_b32 v%d, 0" % (FT + i))
set_exec_lt(32)
a("ds_write_b128 v%d, %s offset:%d" % (V_L16, vr(FT, 4), QL + 1024))
set_exec_lt(16)
a("ds_write_b128 v%d, %s offset:%d" % (V_L16, vr(FT, 4), PL + 512))
exec_all()
tag_issue()
bar()
tag_finish()
sleep(DLY["f"])
a("s_lshl_b32 s%d, s%d, 11" % (S_T0 + 8, S_G))
a("v_lshlrev_b32 v%d, 5, v1" % (TT + 1))
a("s_mov_b32 s%d, 0" % S_CNT)
a.lab("L_q0poll")
a("buffer_load_dwordx4 v[48:51], v%d, %s, s%d offen sc1" % (TT + 1, sr(SRD_WS, 4), S_T0 + 8))
a("buffer_load_dwordx4 v[52:55], v%d, %s, s%d offen offset:16 sc1" % (TT + 1, sr(SRD_WS, 4), S_T0 + 8))
a("s_waitcnt vmcnt(0)")
for r in (49, 51, 53, 55):
    a("v_xor_b32 v%d, s%d, v%d" % (r, S_TAG, r))
a("v_or3_b32 v49, v49, v51, v53")
a("v_or_b32 v49, v49, v55")
a("v_cmp_ne_u32 vcc, 0, v49")
a("s_add_u32 s%d, s%d, 1" % (S_CNT, S_CNT))
a("s_cbranch_vccz L_q0done")
sleep(DLY["fr"])
a("s_cmp_lt_u32 s%d, 0x%x" % (S_CNT, POLL_LIMIT))
a("s_cbranch_scc1 L_q0poll")
a.lab("L_q0done")
cnt_stamp(46)
for i in range(4):
    a("v_mov_b32 v%d, v%d" % (FT + i, 48 + 2 * i))
a("ds_write_b128 v%d, %s offset:%d" % (V_L16, vr(FT, 4), QL))
a("s_waitcnt lgkmcnt(0)")
stamp(2)
bar()
a("s_setprio 0")
a("s_lshl_b32 s%d, s%d, 9" % (S_A0, S_G))
a("s_lshl_b32 s%d, s%d, 4" % (S_T0 + 1, S_C))
a("s_add_u32 s%d, s%d, s%d" % (S_A0, S_A0, S_T0 + 1))
load_rows(SRD_C, S_WO, S_A0, 16)
a("s_setprio %d" % DLY["prio"])
bar()
a("v_lshlrev_b32 v%d, 13, v1" % V_O1)
a("v_add_u32 v%d, 4096, v%d" % (V_O2, V_O1))
a("s_lshl_b32 s%d, s2, 4" % S_A0)
a("s_add_u32 s%d, s%d, 0x%x" % (S_A0, S_A0, oR1))
a("s_lshl_b32 s%d, s%d, 16" % (S_A1, S_G))
a("s_lshl_b32 s%d, s%d, 11" % (S_T0 + 1, S_C))
a("s_add_u32 s%d, s%d, s%d" % (S_A1, S_A1, S_T0 + 1))
a("s_lshl_b32 s%d, s%d, 9" % (S_A2, S_G))
a("s_lshr_b32 s%d, s%d, 4" % (S_T0 + 1, S_C))
a("s_lshl_b32 s%d, s%d, 8" % (S_T0 + 1, S_T0 + 1))
a("s_add_u32 s%d, s%d, s%d" % (S_A2, S_A2, S_T0 + 1))
a("s_add_u32 s%d, s%d, 0x%x" % (S_A2, S_A2, oML))
V_PO, V_MO = 13, 14
a("v_and_b32 v%d, 31, v1" % TT)
a("v_lshrrev_b32 v%d, 5, v1" % (TT + 1))
a("v_lshlrev_b32 v%d, 6, v%d" % (V_PO, TT))
a("v_lshl_add_u32 v%d, v%d, 5, v%d" % (V_PO, TT + 1, V_PO))
a("v_lshlrev_b32 v%d, 3, v%d" % (V_MO, TT))
a("s_waitcnt vmcnt(0)")
perm_rows(16)
a.lab("L_G2loop")
bar()
a("s_add_u32 s%d, s%d, s%d" % (S_T0 + 8, S_A1, S_L))
a("s_add_u32 s%d, s%d, s%d" % (S_T0 + 9, S_A2, S_L))
poll([(48, 4, V_PO, "s%d" % (S_T0 + 8), 0), (52, 4, V_PO, "s%d" % (S_T0 + 8), 16), (56, 2, V_MO, "s%d" % (S_T0 + 9), 0)], TT, DLY["p"], delay0=DLY["p0"], retry0=DLY["r0"], cidx=48)
stamp(3, True)
a("v_mov_b32 v58, v56")
a("s_nop 1")
dpp_reduce64("v_max_f32", [58])
a("v_readlane_b32 s%d, v58, 63" % S_T0)
a("s_nop 1")
a("v_subrev_f32 v58, s%d, v56" % S_T0)
a("v_mul_f32 v58, 0x%x, v58" % LOG2E)
a("v_exp_f32 v58, v58")
a("s_nop 0")
for i in range(4):
    a("v_pk_mul_f32 %s, %s, v[58:59] op_sel_hi:[1,0]" % (vr(48 + 2 * i, 2), vr(48 + 2 * i, 2)))
a("v_mul_f32 v57, v57, v58")
a("s_nop 1")
dpp_reduce32("v_add_f32", list(range(48, 56)) + [57])
a("s_add_u32 s%d, s%d, s%d" % (S_T0, S_A0, S_L))
a("v_rcp_f32 v58, v57")
a("s_nop 0")
for i in range(4):
    a("v_pk_mul_f32 %s, %s, v[58:59] op_sel_hi:[1,0]" % (vr(48 + 2 * i, 2), vr(48 + 2 * i, 2)))
for i in range(4):
    a("v_cvt_pk_bf16_f32 v%d, v%d, v%d" % (TT + i, 48 + 2 * i, 49 + 2 * i))
a("s_nop 0")
for i in range(4):
    a("v_readlane_b32 s%d, v%d, 31" % (S_PAIR + i, TT + i))
    a("v_readlane_b32 s%d, v%d, 63" % (S_PAIR + 4 + i, TT + i))
a("s_nop 1")
part_gemv(GA, 8)
set_exec_lt(56)
a("buffer_store_dwordx4 %s, v%d, %s, s%d offen sc1" % (vr(GA, 4), V_O1, sr(SRD_WS, 4), S_T0))
a("buffer_store_dwordx4 %s, v%d, %s, s%d offen sc1" % (vr(GA + 4, 4), V_O2, sr(SRD_WS, 4), S_T0))
exec_all()
stamp(4, True)
bar()
a("s_cmp_lg_u32 s%d, 0x%x" % (S_L, BLK))
a("s_cbranch_scc1 L_G2end")
bar(4)
a("s_lshl_b32 s%d, s%d, 10" % (S_T0 + 8, S_G))
a("s_add_u32 s%d, s%d, 0x%x" % (S_T0 + 8, S_T0 + 8, BLK + oQN))
poll([(FT, 4, V_L16, "s%d" % (S_T0 + 8), 0)], TT, DLY["q"], cidx=49)
a("ds_write_b128 v%d, %s offset:%d" % (V_L16, vr(FT, 4), QL))
a("s_waitcnt lgkmcnt(0)")
stamp(5)
bar(2)
a("s_add_u32 s%d, s%d, 0x%x" % (S_L, S_L, LS))
a("s_branch L_G2loop")
a.lab("L_G2end")
stamp_flush()
a("s_endpgm")

a.lab("L_G3")
if DBG:
    a("s_memrealtime s[96:97]")
a("s_mul_i32 s%d, s2, %d" % (S_T0, CLR_PER_WG))
a("s_add_u32 s%d, s%d, 0x%x" % (S_T0, S_T0, BLK))
a("s_add_u32 s%d, s%d, 4096" % (S_T0 + 1, S_T0))
a("s_add_u32 s%d, s%d, 8192" % (S_T0 + 2, S_T0))
for i in range(4):
    a("v_mov_b32 v%d, -1" % (FT + i))
for i in range(12):
    a("buffer_store_dwordx4 %s, v%d, %s, s%d offen offset:%d sc1" % (vr(FT, 4), V_L16, sr(SRD_WS, 4), S_T0 + i // 4, (i % 4) * 1024))
tag_issue()
a("s_mul_i32 s%d, s%d, 14" % (S_A0, S_G))
a("s_add_u32 s%d, s%d, s%d" % (S_A0, S_A0, S_CP))
a("s_lshl_b32 s%d, s%d, 3" % (S_A1, S_A0))
a("s_lshl_b32 s%d, s%d, 12" % (S_A0, S_A0))
srd(SRD_A, S_X, 896)
srd(SRD_B, S_B2, 896)
a("buffer_load_dwordx2 v[%d:%d], v%d, %s, s%d offen" % (TT, TT + 1, V_ZERO, sr(SRD_A, 4), S_A1))
a("buffer_load_dwordx2 v[%d:%d], v%d, %s, s%d offen" % (TT + 2, TT + 3, V_ZERO, sr(SRD_B, 4), S_A1))
bar()
tag_finish()
stamp(5)
a("s_lshl_b32 s%d, s2, 3" % S_T0)
a("s_add_u32 s%d, s%d, 0x%x" % (S_T0, S_T0, DONE))
a("v_mov_b32 v%d, s%d" % (TT + 4, S_TAG))
a("v_mov_b32 v%d, s%d" % (TT + 5, S_TAG))
set_exec_lt(1)
a("buffer_store_dwordx2 v[%d:%d], v%d, %s, s%d offen sc1" % (TT + 4, TT + 5, V_ZERO, sr(SRD_WS, 4), S_T0))
exec_all()
XR, B2R = 16, 20
for i in range(2):
    a("v_lshlrev_b32 v%d, 16, v%d" % (XR + 2 * i, TT + i))
    a("v_and_b32 v%d, 0xffff0000, v%d" % (XR + 2 * i + 1, TT + i))
    a("v_lshlrev_b32 v%d, 16, v%d" % (B2R + 2 * i, TT + 2 + i))
    a("v_and_b32 v%d, 0xffff0000, v%d" % (B2R + 2 * i + 1, TT + 2 + i))
srd(SRD_A, S_OUT, 896)
a("v_min_u32 v%d, 31, v1" % V_O1)
a("v_lshlrev_b32 v%d, 4, v%d" % (V_O1, V_O1))
a("v_cmp_gt_u32 vcc, 32, v1")
a("s_nop 1")
a("v_cndmask_b32 v12, 0, 1.0, vcc")
bar(2)


def rnd4(r, t):
    a("v_cvt_pk_bf16_f32 v%d, v%d, v%d" % (t, r, r + 1))
    a("v_cvt_pk_bf16_f32 v%d, v%d, v%d" % (t + 1, r + 2, r + 3))
    a("v_lshlrev_b32 v%d, 16, v%d" % (r, t))
    a("v_and_b32 v%d, 0xffff0000, v%d" % (r + 1, t))
    a("v_lshlrev_b32 v%d, 16, v%d" % (r + 2, t + 1))
    a("v_and_b32 v%d, 0xffff0000, v%d" % (r + 3, t + 1))


G4 = 64
a.lab("L_G3loop")
bar(2)
a("s_add_u32 s%d, s%d, s%d" % (S_T0 + 8, S_A0, S_L))
a("s_add_u32 s%d, s%d, 0x%x" % (S_T0 + 8, S_T0 + 8, oR1))
poll([(G4 + 4 * i, 4, V_L16, "s%d" % (S_T0 + 8), 1024 * i) for i in range(4)], TT, DLY["r1"], retry0=DLY["r0"], cidx=48)
stamp(1, True)
for i in range(2):
    a("v_pk_add_f32 %s, %s, %s" % (vr(G4 + 2 * i, 2), vr(G4 + 2 * i, 2), vr(G4 + 4 + 2 * i, 2)))
    a("v_pk_add_f32 %s, %s, %s" % (vr(G4 + 8 + 2 * i, 2), vr(G4 + 8 + 2 * i, 2), vr(G4 + 12 + 2 * i, 2)))
for i in range(2):
    a("v_pk_add_f32 %s, %s, %s" % (vr(G4 + 2 * i, 2), vr(G4 + 2 * i, 2), vr(G4 + 8 + 2 * i, 2)))
a("s_add_u32 s%d, s%d, s%d" % (S_T0, S_A1, S_L))
a("s_add_u32 s%d, s%d, 0x%x" % (S_T0, S_T0, oX1))
dpp_reduce64("v_add_f32", [G4, G4 + 1, G4 + 2, G4 + 3])
rnd4(G4, TT)
for i in range(2):
    a("v_pk_add_f32 %s, %s, %s" % (vr(XR + 2 * i, 2), vr(XR + 2 * i, 2), vr(G4 + 2 * i, 2)))
rnd4(XR, TT)
a("s_cmp_ge_u32 s%d, 14" % S_C)
a("s_cbranch_scc1 L_G3skipx1")
a("s_mov_b32 exec_lo, 0")
a("s_mov_b32 exec_hi, 0x80000000")
a("buffer_store_dwordx2 v[%d:%d], v%d, %s, s%d offen sc1" % (TT, TT + 1, V_ZERO, sr(SRD_WS, 4), S_T0))
exec_all()
a.lab("L_G3skipx1")
stamp(2, True)
bar(2)
a("s_add_u32 s%d, s%d, s%d" % (S_T0 + 8, S_A0, S_L))
a("s_add_u32 s%d, s%d, 0x%x" % (S_T0 + 8, S_T0 + 8, oR2))
poll([(G4 + 4 * i, 4, V_L16, "s%d" % (S_T0 + 8), 1024 * i) for i in range(3)] + [(G4 + 12, 4, V_O1, "s%d" % (S_T0 + 8), 3072)], TT, DLY["r2"], cidx=49)
stamp(3, True)
for i in range(2):
    a("v_pk_mul_f32 %s, %s, v[12:13] op_sel_hi:[1,0]" % (vr(G4 + 12 + 2 * i, 2), vr(G4 + 12 + 2 * i, 2)))
for i in range(2):
    a("v_pk_add_f32 %s, %s, %s" % (vr(G4 + 2 * i, 2), vr(G4 + 2 * i, 2), vr(G4 + 4 + 2 * i, 2)))
    a("v_pk_add_f32 %s, %s, %s" % (vr(G4 + 8 + 2 * i, 2), vr(G4 + 8 + 2 * i, 2), vr(G4 + 12 + 2 * i, 2)))
for i in range(2):
    a("v_pk_add_f32 %s, %s, %s" % (vr(G4 + 2 * i, 2), vr(G4 + 2 * i, 2), vr(G4 + 8 + 2 * i, 2)))
a("s_add_u32 s%d, s%d, s%d" % (S_T0, S_A1, S_L))
a("s_add_u32 s%d, s%d, 0x%x" % (S_T0, S_T0, oXN))
dpp_reduce64("v_add_f32", [G4, G4 + 1, G4 + 2, G4 + 3])
rnd4(G4, TT)
for i in range(2):
    a("v_pk_add_f32 %s, %s, %s" % (vr(G4 + 2 * i, 2), vr(G4 + 2 * i, 2), vr(B2R + 2 * i, 2)))
rnd4(G4, TT)
for i in range(2):
    a("v_pk_add_f32 %s, %s, %s" % (vr(XR + 2 * i, 2), vr(XR + 2 * i, 2), vr(G4 + 2 * i, 2)))
rnd4(XR, TT)
a("s_cmp_lg_u32 s%d, 0x%x" % (S_L, BLK))
a("s_cbranch_scc1 L_G3final")
a("s_cmp_ge_u32 s%d, 14" % S_C)
a("s_cbranch_scc1 L_G3skipx2")
a("s_mov_b32 exec_lo, 0")
a("s_mov_b32 exec_hi, 0x80000000")
a("buffer_store_dwordx2 v[%d:%d], v%d, %s, s%d offen sc1" % (TT, TT + 1, V_ZERO, sr(SRD_WS, 4), S_T0))
exec_all()
a.lab("L_G3skipx2")
stamp(4, True)
bar(4)
a("s_add_u32 s%d, s%d, 0x%x" % (S_L, S_L, LS))
a("s_branch L_G3loop")
a.lab("L_G3final")
a("s_cmp_ge_u32 s%d, 14" % S_C)
a("s_cbranch_scc1 L_G3skipout")
a("s_mov_b32 exec_lo, 0")
a("s_mov_b32 exec_hi, 0x80000000")
a("buffer_store_dwordx2 v[%d:%d], v%d, %s, s%d offen" % (TT, TT + 1, V_ZERO, sr(SRD_A, 4), S_A1))
exec_all()
a.lab("L_G3skipout")
stamp(4, True)
a("s_cmp_lg_u32 s2, 0")
a("s_cbranch_scc1 L_G3skipep")
a("s_mov_b32 s%d, 0x%x" % (S_T0, EPOCH))
a("v_mov_b32 v%d, s%d" % (TT, S_TAG))
set_exec_lt(1)
a("buffer_store_dword v%d, v%d, %s, s%d offen sc1" % (TT, V_ZERO, sr(SRD_WS, 4), S_T0))
if DBG:
    a("s_memrealtime s[98:99]")
    a("s_waitcnt lgkmcnt(0)")
    a("s_sub_u32 s98, s98, s96")
    a("v_mov_b32 v%d, s98" % TT)
    srd(SRD_B, S_DBG, 256)
    a("buffer_store_dword v%d, v%d, %s, 0 offen" % (TT, V_ZERO, sr(SRD_B, 4)))
exec_all()
a.lab("L_G3skipep")
stamp_flush()
a.lab("L_end")
a("s_endpgm")

a.l.append('.section .rodata,"a"')
a.l.append(".p2align 6")
a.l.append(".amdhsa_kernel %s_kernel" % NAME)
a.l.append("  .amdhsa_next_free_vgpr 256")
a.l.append("  .amdhsa_next_free_sgpr 102")
a.l.append("  .amdhsa_accum_offset 256")
a.l.append("  .amdhsa_group_segment_fixed_size 0")
a.l.append("  .amdhsa_kernarg_size 104")
a.l.append("  .amdhsa_user_sgpr_count 2")
a.l.append("  .amdhsa_user_sgpr_kernarg_segment_ptr 1")
a.l.append("  .amdhsa_system_sgpr_workgroup_id_x 1")
a.l.append(".end_amdhsa_kernel")

out = sys.argv[1] if len(sys.argv) > 1 else "cdna_kernels/%s.s" % NAME
open(out, "w").write(a.text())
print("wrote", out, "lines", len(a.l), "lds", LDS_SIZE)
```

```python
import sys, os

NAME = "interleave_layers__sliding_block_cached__mixer_channel_mlp__decode"

Q0T = 0x0000
EPOCH = 0x4000
DONE = 0x5000
BLK = 0x8000
oP = 0x0
oR1 = 0x80000
oR2 = 0xF0000
oML = 0x160000
oX1 = 0x161000
oXN = 0x161400
oQN = 0x162000
LS = 0x164000
CLR_PER_WG = 12288
WS_SIZE = BLK + 256 * CLR_PER_WG
assert BLK + 2 * LS <= WS_SIZE
TS_BASE = 0x400000

VROW = 544
QL = 0
PL = QL + 3 * 512
ST = PL + 3 * 256
CNT = ST + 64
WQS = CNT + 64
W1S = WQS + 14336
YL = W1S + 14336
YL2 = YL + 1024
VSTB = YL2 + 1024
RP = 1088
LDS_SIZE = VSTB + 128 * VROW

POLL_LIMIT = 1 << 20
DIAG = int(os.environ.get("DIAG", "0"))
DBG = int(os.environ.get("DBG", "0"))
DLY = dict(p=14, r1=20, x1=26, r2=20, x2=26, q=14, f=110, fr=8, r=1, p0=14, r0=2, wdly=150, prio=3, chk=70, vw=32, dma=0, wlate=0, c1=1, vpre=1, kfirst=0, wqd=0, xnoclr=0, xklin=0, xnow=0, cnt=0)
for k in DLY:
    DLY[k] = int(os.environ.get("DLY_" + k, DLY[k]))


class A:
    def __init__(self):
        self.l = []
        self.n = 0

    def __call__(self, s):
        self.l.append("    " + s)

    def lab(self, s):
        self.l.append(s + ":")

    def new(self, p="L"):
        self.n += 1
        return "%s_%d" % (p, self.n)

    def text(self):
        return "\n".join(self.l) + "\n"


a = A()


def vr(lo, n):
    return "v[%d:%d]" % (lo, lo + n - 1) if n > 1 else "v%d" % lo


def sr(lo, n):
    return "s[%d:%d]" % (lo, lo + n - 1) if n > 1 else "s%d" % lo


S_X, S_K, S_V, S_WQ, S_WO, S_BX, S_W1, S_B1, S_W2, S_B2, S_OUT, S_DBG, S_WS = 4, 6, 8, 10, 12, 14, 16, 18, 20, 22, 24, 26, 28
S_WAVE, S_G, S_C = 30, 31, 3
SRD_WS, SRD_A, SRD_B, SRD_C = 32, 36, 40, 44
S_T0 = 52
S_PAIR = 72
S_CNT = 80
S_L = 81
S_SEL0, S_SEL1 = 82, 83
S_TS = 84
S_TSOFF = 86
S_A0, S_A1, S_A2, S_A3 = 87, 92, 93, 95
SRD_TS = 88
S_TAG = 94
S_CP = 100
S_CH = 101
V_TS = 31


def srd(dst, base, size, off_sgpr=None):
    if off_sgpr is None:
        a("s_mov_b32 s%d, s%d" % (dst, base))
        a("s_and_b32 s%d, s%d, 0xffff" % (dst + 1, base + 1))
    else:
        a("s_add_u32 s%d, s%d, s%d" % (dst, base, off_sgpr))
        a("s_addc_u32 s%d, s%d, 0" % (dst + 1, base + 1))
        a("s_and_b32 s%d, s%d, 0xffff" % (dst + 1, dst + 1))
    a("s_mov_b32 s%d, 0x%x" % (dst + 2, size))
    a("s_mov_b32 s%d, 0x00020000" % (dst + 3))


def stamp(idx, layered=False):
    if not DIAG:
        return
    a("s_memrealtime %s" % sr(S_TS, 2))
    if layered:
        a("s_cmp_lg_u32 s%d, 0x%x" % (S_L, BLK))
        a("s_cselect_b32 m0, %d, %d" % (idx + 8, idx))
        a("s_waitcnt lgkmcnt(0)")
        a("s_nop 3")
        a("v_writelane_b32 v%d, s%d, m0" % (V_TS, S_TS))
    else:
        a("s_waitcnt lgkmcnt(0)")
        a("v_writelane_b32 v%d, s%d, %d" % (V_TS, S_TS, idx))


def cnt_stamp(idx, layered=False):
    if not DIAG:
        return
    if layered:
        a("s_cmp_lg_u32 s%d, 0x%x" % (S_L, BLK))
        a("s_cselect_b32 m0, %d, %d" % (idx + 4, idx))
        a("s_nop 3")
        a("v_writelane_b32 v%d, s%d, m0" % (V_TS, S_CNT))
    else:
        a("v_writelane_b32 v%d, s%d, %d" % (V_TS, S_CNT, idx))


def stamp_init():
    if DIAG:
        a("v_mov_b32 v%d, 0x5a5a5a5a" % V_TS)


def stamp_flush():
    if not DIAG:
        return
    a("s_lshl_b32 s%d, s2, 11" % S_TSOFF)
    a("s_lshl_b32 s%d, s%d, 8" % (S_TS, S_WAVE))
    a("s_add_u32 s%d, s%d, s%d" % (S_TSOFF, S_TSOFF, S_TS))
    a("v_lshlrev_b32 v0, 2, v1")
    a("s_mov_b64 exec, -1")
    a("buffer_store_dword v%d, v0, %s, s%d offen" % (V_TS, sr(SRD_TS, 4), S_TSOFF))


def set_exec_lt(n):
    if n >= 64:
        a("s_mov_b64 exec, -1")
    elif n <= 32:
        a("s_mov_b32 exec_lo, 0x%x" % ((1 << n) - 1))
        a("s_mov_b32 exec_hi, 0")
    else:
        a("s_mov_b32 exec_lo, -1")
        a("s_mov_b32 exec_hi, 0x%x" % ((1 << (n - 32)) - 1))


def exec_all():
    a("s_mov_b64 exec, -1")


def sleep(n):
    while n > 0:
        a("s_sleep %d" % min(n, 64))
        n -= min(n, 64)


def bar(n=1):
    for _ in range(n):
        a("s_barrier")


def poll(loads, vtmp, delay=0, delay0=None, retry=None, retry0=None, cidx=None):
    if delay0 is not None and delay0 != delay:
        l1 = a.new("Ld1")
        l2 = a.new("Ld2")
        a("s_cmp_lg_u32 s%d, 0x%x" % (S_L, BLK))
        a("s_cbranch_scc1 %s" % l1)
        sleep(delay0)
        a("s_branch %s" % l2)
        a.lab(l1)
        sleep(delay)
        a.lab(l2)
    else:
        sleep(delay)
    a("s_mov_b32 s%d, 0" % S_CNT)
    top = a.new("Lpoll")
    done = a.new("Lpolld")
    a.lab(top)
    regs = []
    for (d, n, vo, so, imm) in loads:
        op = {1: "buffer_load_dword", 2: "buffer_load_dwordx2", 4: "buffer_load_dwordx4"}[n]
        a("%s %s, v%d, %s, %s offen offset:%d sc1" % (op, vr(d, n), vo, sr(SRD_WS, 4), so, imm))
        regs += list(range(d, d + n))
    a("s_waitcnt vmcnt(0)")
    cur = None
    i = 0
    while i < len(regs):
        if cur is None:
            if len(regs) - i >= 3:
                a("v_max3_u32 v%d, v%d, v%d, v%d" % (vtmp, regs[i], regs[i + 1], regs[i + 2]))
                i += 3
            elif len(regs) - i == 2:
                a("v_max_u32 v%d, v%d, v%d" % (vtmp, regs[i], regs[i + 1]))
                i += 2
            else:
                a("v_mov_b32 v%d, v%d" % (vtmp, regs[i]))
                i += 1
            cur = vtmp
        else:
            if len(regs) - i >= 2:
                a("v_max3_u32 v%d, v%d, v%d, v%d" % (vtmp, vtmp, regs[i], regs[i + 1]))
                i += 2
            else:
                a("v_max_u32 v%d, v%d, v%d" % (vtmp, vtmp, regs[i]))
                i += 1
    a("v_cmp_eq_u32 vcc, -1, v%d" % vtmp)
    a("s_add_u32 s%d, s%d, 1" % (S_CNT, S_CNT))
    a("s_cbranch_vccz %s" % done)
    if retry is None:
        retry = DLY["r"]
    if retry0 is not None and retry0 > retry:
        sleep(retry)
        lr = a.new("Lr")
        a("s_cmp_lg_u32 s%d, 0x%x" % (S_L, BLK))
        a("s_cbranch_scc1 %s" % lr)
        sleep(retry0 - retry)
        a.lab(lr)
    else:
        sleep(retry)
    a("s_cmp_lt_u32 s%d, 0x%x" % (S_CNT, POLL_LIMIT))
    a("s_cbranch_scc1 %s" % top)
    a.lab(done)
    if cidx is not None:
        cnt_stamp(cidx, True)


def dpp_steps(op, regs, steps):
    for st in steps:
        for r in regs:
            a("%s_dpp v%d, v%d, v%d %s" % (op, r, r, r, st))
        if len(regs) < 3:
            a("s_nop %d" % (2 - len(regs)))


ROR = ["row_ror:8 row_mask:0xf bank_mask:0xf", "row_ror:4 row_mask:0xf bank_mask:0xf",
       "row_ror:2 row_mask:0xf bank_mask:0xf", "row_ror:1 row_mask:0xf bank_mask:0xf"]
BC15 = "row_bcast:15 row_mask:0xa bank_mask:0xf"
BC31 = "row_bcast:31 row_mask:0xc bank_mask:0xf"


def dpp_reduce64(op, regs):
    dpp_steps(op, regs, ROR + [BC15, BC31])


def dpp_reduce_row(op, regs):
    dpp_steps(op, regs, ROR)


def dpp_reduce32(op, regs):
    dpp_steps(op, regs, ROR + [BC15])


LOG2E = 0x3fb8aa3b
INV448 = 0x3b124925
EPS = 0x3727c5ac


def layernorm(X, Y, F, D, T, vmaskf, vmaskb, mask_out):
    for i in range(4):
        a("v_lshlrev_b32 v%d, 16, v%d" % (F + 2 * i, X + i))
        a("v_and_b32 v%d, 0xffff0000, v%d" % (F + 2 * i + 1, X + i))
    a("v_readlane_b32 s%d, v%d, 0" % (S_T0, F))
    a("s_nop 0")
    a("s_mov_b32 s%d, s%d" % (S_T0 + 1, S_T0))
    a("s_nop 0")
    for i in range(4):
        a("v_pk_add_f32 %s, %s, %s neg_lo:[0,1] neg_hi:[0,1]" % (vr(D + 2 * i, 2), vr(F + 2 * i, 2), sr(S_T0, 2)))
    a("v_pk_add_f32 %s, %s, %s" % (vr(T, 2), vr(D, 2), vr(D + 2, 2)))
    a("v_pk_mul_f32 %s, %s, %s" % (vr(T + 2, 2), vr(D, 2), vr(D, 2)))
    a("v_pk_add_f32 %s, %s, %s" % (vr(T + 4, 2), vr(D + 4, 2), vr(D + 6, 2)))
    a("v_pk_fma_f32 %s, %s, %s, %s" % (vr(T + 2, 2), vr(D + 2, 2), vr(D + 2, 2), vr(T + 2, 2)))
    a("v_pk_add_f32 %s, %s, %s" % (vr(T, 2), vr(T, 2), vr(T + 4, 2)))
    a("v_pk_fma_f32 %s, %s, %s, %s" % (vr(T + 2, 2), vr(D + 4, 2), vr(D + 4, 2), vr(T + 2, 2)))
    a("v_add_f32 v%d, v%d, v%d" % (T, T, T + 1))
    a("v_pk_fma_f32 %s, %s, %s, %s" % (vr(T + 2, 2), vr(D + 6, 2), vr(D + 6, 2), vr(T + 2, 2)))
    a("v_mul_f32 v%d, v%d, v%d" % (T, T, vmaskf))
    a("v_add_f32 v%d, v%d, v%d" % (T + 1, T + 2, T + 3))
    a("v_mul_f32 v%d, v%d, v%d" % (T + 1, T + 1, vmaskf))
    a("s_nop 1")
    dpp_reduce64("v_add_f32", [T, T + 1])
    a("v_readlane_b32 s%d, v%d, 63" % (S_T0 + 2, T))
    a("v_readlane_b32 s%d, v%d, 63" % (S_T0 + 3, T + 1))
    a("v_mov_b32 v%d, 0x%x" % (T + 2, INV448))
    a("s_nop 0")
    a("v_mul_f32 v%d, s%d, v%d" % (T, S_T0 + 2, T + 2))
    a("v_mul_f32 v%d, s%d, v%d" % (T + 1, S_T0 + 3, T + 2))
    a("v_fma_f32 v%d, -v%d, v%d, v%d" % (T + 1, T, T, T + 1))
    a("v_add_f32 v%d, s%d, v%d" % (T, S_T0, T))
    a("v_max_f32 v%d, 0, v%d" % (T + 1, T + 1))
    a("v_cvt_pk_bf16_f32 v%d, v%d, v%d" % (T + 3, T, T + 1))
    a("v_lshlrev_b32 v%d, 16, v%d" % (T, T + 3))
    a("v_and_b32 v%d, 0xffff0000, v%d" % (T + 2, T + 3))
    a("v_add_f32 v%d, 0x%x, v%d" % (T + 2, EPS, T + 2))
    for i in range(4):
        a("v_pk_add_f32 %s, %s, %s op_sel_hi:[1,0] neg_lo:[0,1] neg_hi:[0,1]" % (vr(D + 2 * i, 2), vr(F + 2 * i, 2), vr(T, 2)))
    a("v_cvt_pk_bf16_f32 v%d, v%d, v%d" % (T + 2, T + 2, T + 2))
    a("v_cvt_pk_bf16_f32 v%d, v%d, v%d" % (F, D, D + 1))
    a("v_and_b32 v%d, 0xffff0000, v%d" % (T + 2, T + 2))
    a("v_cvt_pk_bf16_f32 v%d, v%d, v%d" % (F + 1, D + 2, D + 3))
    a("v_sqrt_f32 v%d, v%d" % (T + 2, T + 2))
    a("v_cvt_pk_bf16_f32 v%d, v%d, v%d" % (F + 2, D + 4, D + 5))
    a("v_cvt_pk_bf16_f32 v%d, v%d, v%d" % (F + 3, D + 6, D + 7))
    a("v_cvt_pk_bf16_f32 v%d, v%d, v%d" % (T + 2, T + 2, T + 2))
    for i in range(2):
        a("v_lshlrev_b32 v%d, 16, v%d" % (D + 2 * i, F + i))
        a("v_and_b32 v%d, 0xffff0000, v%d" % (D + 2 * i + 1, F + i))
    a("v_and_b32 v%d, 0xffff0000, v%d" % (T + 2, T + 2))
    for i in range(2, 4):
        a("v_lshlrev_b32 v%d, 16, v%d" % (D + 2 * i, F + i))
        a("v_and_b32 v%d, 0xffff0000, v%d" % (D + 2 * i + 1, F + i))
    a("v_rcp_f32 v%d, v%d" % (T + 2, T + 2))
    a("s_nop 0")
    for i in range(4):
        a("v_pk_mul_f32 %s, %s, %s op_sel_hi:[1,0]" % (vr(D + 2 * i, 2), vr(D + 2 * i, 2), vr(T + 2, 2)))
    for i in range(4):
        a("v_cvt_pk_bf16_f32 v%d, v%d, v%d" % (Y + i, D + 2 * i, D + 2 * i + 1))
    if mask_out:
        for i in range(4):
            a("v_and_b32 v%d, v%d, v%d" % (Y + i, Y + i, vmaskb))


def gemv16(Yp, ylds, vaddr_w, vaddr_r, AF, BF, D):
    a("ds_write_b128 v%d, %s offset:%d" % (vaddr_w, vr(Yp, 4), ylds))
    a("s_waitcnt lgkmcnt(0)")
    for s in range(14):
        a("ds_read_b128 %s, v%d offset:%d" % (vr(AF + 4 * s, 4), vaddr_r, ylds + 64 * s))
    for s in range(14):
        a("s_waitcnt lgkmcnt(%d)" % (13 - s))
        a("v_mfma_f32_16x16x32_bf16 %s, %s, %s, %s" % (vr(D, 4), vr(AF + 4 * s, 4), vr(BF + 4 * s, 4), "0" if s == 0 else vr(D, 4)))
    a("s_nop 7")
    a("s_nop 1")


a.l.append("; @launch grid=(256,1,1) block=(512,1,1) lds=%d" % LDS_SIZE)
a.l.append('.amdgcn_target "amdgcn-amd-amdhsa--gfx950"')
a.l.append(".text")
a.l.append(".globl %s_kernel" % NAME)
a.l.append(".p2align 8")
a.l.append(".type %s_kernel,@function" % NAME)
a.lab("%s_kernel" % NAME)
a("s_cmp_ge_u32 s2, 256")
a("s_cbranch_scc1 L_end")
a("s_load_dwordx16 s[4:19], s[0:1], 0")
a("s_load_dwordx8 s[20:27], s[0:1], 64")
a("s_load_dwordx2 s[28:29], s[0:1], 96")
a("v_and_b32 v1, 63, v0")
a("v_lshrrev_b32 v2, 6, v0")
a("s_and_b32 s%d, s2, 7" % S_G)
a("v_readfirstlane_b32 s%d, v2" % S_WAVE)
a("s_lshr_b32 s%d, s2, 3" % S_C)
a("s_cmp_ge_u32 s%d, 28" % S_C)
a("s_cselect_b32 s%d, 28, 0" % S_T0)
a("s_sub_u32 s%d, s%d, s%d" % (S_CH, S_C, S_T0))
a("s_cmp_ge_u32 s%d, 14" % S_CH)
a("s_cselect_b32 s%d, 14, 0" % S_T0)
a("s_sub_u32 s%d, s%d, s%d" % (S_CP, S_CH, S_T0))
a("s_mov_b32 s%d, 0x05040100" % S_SEL0)
a("s_mov_b32 s%d, 0x07060302" % S_SEL1)
a("s_mov_b32 s%d, 0x%x" % (S_L, BLK))
a("s_waitcnt lgkmcnt(0)")
srd(SRD_WS, S_WS, WS_SIZE)
if DIAG:
    a("s_add_u32 s%d, s%d, 0x%x" % (SRD_TS, S_WS, TS_BASE))
    a("s_addc_u32 s%d, s%d, 0" % (SRD_TS + 1, S_WS + 1))
    a("s_and_b32 s%d, s%d, 0xffff" % (SRD_TS + 1, SRD_TS + 1))
    a("s_mov_b32 s%d, 0x80000" % (SRD_TS + 2))
    a("s_mov_b32 s%d, 0x00020000" % (SRD_TS + 3))
a("s_cmp_ge_u32 s%d, 4" % S_WAVE)
a("s_cbranch_scc1 L_G")

KF, VF, QF, ACC, PF, SC = 64, 128, 192, 192, 32, 16
V_OK0, V_OK1, V_OV, V_VW, V_VR, V_QR, V_PR, V_PW, V_L4, V_Z, V_STW = 2, 3, 4, 5, 6, 7, 8, 9, 10, 11, 24
stamp_init()
stamp(0)
a("s_lshl_b32 s%d, s%d, 25" % (S_T0, S_G))
a("s_lshl_b32 s%d, s%d, 16" % (S_T0 + 1, S_C))
a("s_add_u32 s%d, s%d, s%d" % (S_T0, S_T0, S_T0 + 1))
a("s_lshl_b32 s%d, s%d, 14" % (S_T0 + 1, S_WAVE))
a("s_add_u32 s%d, s%d, s%d" % (S_T0, S_T0, S_T0 + 1))
a("s_add_u32 s%d, s%d, %d" % (S_T0, S_T0, 61440 * 512))
srd(SRD_A, S_K, 16384, S_T0)
srd(SRD_B, S_V, 16384, S_T0)
a("v_and_b32 v12, 15, v1")
a("v_lshrrev_b32 v13, 4, v1")
a("v_lshlrev_b32 v%d, 9, v12" % V_OK0)
a("v_lshl_add_u32 v%d, v13, 4, v%d" % (V_OK0, V_OK0))
a("v_add_u32 v%d, 8192, v%d" % (V_OK1, V_OK0))
a("v_lshlrev_b32 v%d, 4, v1" % V_OV)
for j in range(1, 4):
    a("s_mov_b32 s%d, %d" % (S_T0 + 4 + j, 4096 * j))
nk = 0
for kb in range(2):
    for s in range(8):
        if nk == DLY["kfirst"]:
            bar()
        if DLY["xklin"]:
            so = "0" if nk < 4 else "s%d" % (S_T0 + 4 + nk // 4)
            a("buffer_load_dwordx4 %s, v%d, %s, %s offen offset:%d nt" % (vr(KF + nk * 4, 4), V_OV, sr(SRD_A, 4), so, (nk % 4) * 1024))
        else:
            a("buffer_load_dwordx4 %s, v%d, %s, 0 offen offset:%d nt" % (vr(KF + kb * 32 + s * 4, 4), V_OK0 if kb == 0 else V_OK1, sr(SRD_A, 4), s * 64))
        nk += 1
if DLY["kfirst"] >= 16:
    bar()
VL = []
for i in range(16):
    so = "0" if i < 4 else "s%d" % (S_T0 + 4 + i // 4)
    if DLY["vw"] < 32:
        VL.append("s_waitcnt vmcnt(%d)" % (DLY["vw"] - 1))
    VL.append("buffer_load_dwordx4 %s, v%d, %s, %s offen offset:%d nt" % (vr(VF + i * 4, 4), V_OV, sr(SRD_B, 4), so, (i % 4) * 1024))
a("v_lshrrev_b32 v14, 5, v1")
a("v_mul_u32_u24 v14, %d, v14" % VROW)
a("v_and_b32 v15, 31, v1")
a("v_lshl_add_u32 v%d, v15, 4, v14" % V_VW)
a("s_mul_i32 s%d, s%d, %d" % (S_T0, S_WAVE, 32 * VROW))
a("s_add_u32 s%d, s%d, %d" % (S_T0, S_T0, VSTB))
a("v_add_u32 v%d, s%d, v%d" % (V_VW, S_T0, V_VW))
if DLY["dma"]:
    a("v_lshrrev_b32 v14, 3, v12")
    a("v_lshl_add_u32 v14, v13, 2, v14")
    a("v_mul_u32_u24 v14, %d, v14" % RP)
    a("v_bfe_u32 v15, v12, 2, 1")
    a("v_lshl_add_u32 v14, v15, 9, v14")
else:
    a("v_lshrrev_b32 v14, 2, v12")
    a("v_lshl_add_u32 v14, v13, 3, v14")
    a("v_mul_u32_u24 v14, %d, v14" % VROW)
a("v_and_b32 v15, 3, v12")
a("v_lshl_add_u32 v%d, v15, 3, v14" % V_VR)
a("s_lshl_b32 s%d, s%d, 7" % (S_T0, S_WAVE))
a("s_add_u32 s%d, s%d, %d" % (S_T0, S_T0, VSTB))
a("v_add_u32 v%d, s%d, v%d" % (V_VR, S_T0, V_VR))
a("v_min_u32 v14, 2, v12")
a("v_lshlrev_b32 v15, 9, v14")
a("v_lshl_add_u32 v%d, v13, 4, v15" % V_QR)
a("v_lshlrev_b32 v15, 8, v14")
a("v_lshl_add_u32 v%d, v13, 4, v15" % V_PR)
a("s_lshl_b32 s%d, s%d, 6" % (S_T0, S_WAVE))
a("v_lshl_add_u32 v%d, v1, 1, s%d" % (V_PW, S_T0))
a("v_lshlrev_b32 v%d, 2, v1" % V_L4)
a("v_mov_b32 v%d, 0" % V_Z)
a("s_lshl_b32 s%d, s%d, 4" % (S_T0, S_WAVE))
a("v_mov_b32 v%d, s%d" % (V_STW, S_T0))
a("s_lshl_b32 s%d, s%d, 16" % (S_A0, S_G))
a("s_lshl_b32 s%d, s%d, 13" % (S_T0 + 1, S_WAVE))
a("s_add_u32 s%d, s%d, s%d" % (S_A0, S_A0, S_T0 + 1))
a("s_lshl_b32 s%d, s%d, 6" % (S_T0 + 1, S_C))
a("s_add_u32 s%d, s%d, s%d" % (S_A0, S_A0, S_T0 + 1))
a("s_lshl_b32 s%d, s%d, 9" % (S_A1, S_G))
a("s_lshl_b32 s%d, s%d, 3" % (S_T0 + 1, S_C))
a("s_add_u32 s%d, s%d, s%d" % (S_A1, S_A1, S_T0 + 1))
a("s_add_u32 s%d, s%d, 0x%x" % (S_A1, S_A1, oML))
if not DLY["dma"]:
    for x in VL:
        a(x)
elif DLY["dma"] == 2:
    a("s_mul_i32 s%d, s%d, %d" % (S_T0, S_WAVE, 16 * RP))
    a("s_add_u32 s%d, s%d, %d" % (S_T0, S_T0, VSTB))
    for i in range(16):
        a("s_add_u32 m0, s%d, %d" % (S_T0, i * RP))
        a("s_mov_b32 s%d, %d" % (S_T0 + 8 + (i % 8), i * 1024))
        a("buffer_load_dwordx4 v%d, %s, s%d offen nt lds" % (V_OV, sr(SRD_B, 4), S_T0 + 8 + (i % 8)))
stamp(7)
if DLY["vpre"]:
    for i in range(16):
        a("s_waitcnt vmcnt(%d)" % (15 - i))
        a("ds_write_b128 v%d, %s offset:%d" % (V_VW, vr(VF + 4 * i, 4), i * 2 * VROW))
    a("v_mov_b32 v12, 1")
    a("s_waitcnt lgkmcnt(0)")
    set_exec_lt(1)
    a("ds_add_u32 v%d, v12 offset:%d" % (V_Z, CNT))
    exec_all()
    a.lab("L_Aspin")
    a("ds_read_b32 v12, v%d offset:%d" % (V_Z, CNT))
    a("s_waitcnt lgkmcnt(0)")
    a("v_cmp_gt_u32 vcc, 4, v12")
    a("s_cbranch_vccnz L_Aspin")
    for s_ in range(4):
        for b in range(4):
            for hf in range(2):
                a("ds_read_b64_tr_b16 %s, v%d offset:%d" % (vr(VF + (s_ * 4 + b) * 4 + hf * 2, 2), V_VR, s_ * 32 * VROW + hf * 4 * VROW + b * 32))
    a("s_waitcnt lgkmcnt(0)")
    stamp(2)

a.lab("L_Aloop")
bar()
stamp(1, True)
for s in range(8):
    a("ds_read_b128 %s, v%d offset:%d" % (vr(QF + 4 * s, 4), V_QR, QL + 64 * s))
a("s_waitcnt vmcnt(%d)" % (0 if DLY["dma"] == 1 else 16))
for s in range(8):
    a("s_waitcnt lgkmcnt(%d)" % (7 - s))
    for kb in range(2):
        a("v_mfma_f32_16x16x32_bf16 %s, %s, %s, %s" % (vr(SC + 4 * kb, 4), vr(QF + 4 * s, 4), vr(KF + kb * 32 + 4 * s, 4), "0" if s == 0 else vr(SC + 4 * kb, 4)))
a("s_add_u32 s%d, s%d, s%d" % (S_T0, S_A0, S_L))
a("s_add_u32 s%d, s%d, 4096" % (S_T0 + 1, S_T0))
a("s_add_u32 s%d, s%d, 32768" % (S_T0 + 2, S_T0))
a("s_add_u32 s%d, s%d, 36864" % (S_T0 + 3, S_T0))
a("s_add_u32 s%d, s%d, s%d" % (S_T0 + 4, S_A1, S_L))
a("s_nop 5")
a("v_cvt_pk_bf16_f32 v48, v16, v17")
a("v_cvt_pk_bf16_f32 v49, v20, v21")
a("v_lshlrev_b32 v50, 16, v48")
a("v_and_b32 v51, 0xffff0000, v48")
a("v_lshlrev_b32 v52, 16, v49")
a("v_and_b32 v53, 0xffff0000, v49")
a("v_max_f32 v54, v50, v52")
a("v_max_f32 v55, v51, v53")
a("s_nop 1")
dpp_reduce_row("v_max_f32", [54, 55])
a("v_mov_b32 v56, 0x3db8aa3b")
a("v_sub_f32 v50, v50, v54")
a("v_sub_f32 v52, v52, v54")
a("v_sub_f32 v51, v51, v55")
a("v_sub_f32 v53, v53, v55")
for r in range(50, 54):
    a("v_mul_f32 v%d, v56, v%d" % (r, r))
for r in range(50, 54):
    a("v_exp_f32 v%d, v%d" % (r, r))
a("v_mul_f32 v56, 0x3d800000, v54")
a("v_mul_f32 v58, 0x3d800000, v55")
a("v_add_f32 v57, v50, v52")
a("v_add_f32 v59, v51, v53")
a("v_cvt_pk_bf16_f32 v48, v50, v51")
a("v_cvt_pk_bf16_f32 v49, v52, v53")
set_exec_lt(16)
a("ds_write_b16 v%d, v48 offset:%d" % (V_PW, PL))
a("ds_write_b16_d16_hi v%d, v48 offset:%d" % (V_PW, PL + 256))
a("ds_write_b16 v%d, v49 offset:%d" % (V_PW, PL + 32))
a("ds_write_b16_d16_hi v%d, v49 offset:%d" % (V_PW, PL + 256 + 32))
exec_all()
dpp_reduce_row("v_add_f32", [57, 59])
set_exec_lt(1)
a("ds_write_b128 v%d, v[56:59] offset:%d" % (V_STW, ST))
exec_all()
stamp(3, True)
if not DLY["dma"] and not DLY["vpre"]:
    a("s_cmp_lg_u32 s%d, 0x%x" % (S_L, BLK))
    a("s_cbranch_scc1 L_Anostage")
    for i in range(16):
        a("s_waitcnt vmcnt(%d)" % (15 - i))
        a("ds_write_b128 v%d, %s offset:%d" % (V_VW, vr(VF + 4 * i, 4), i * 2 * VROW))
    a.lab("L_Anostage")
if DLY["dma"] == 2:
    a("s_waitcnt vmcnt(0)")
a("s_waitcnt lgkmcnt(0)")
stamp(4, True)
bar()
stamp(5, True)
a("s_cmp_lg_u32 s%d, 0x%x" % (S_L, BLK))
a("s_cbranch_scc1 L_Anotr")
for s in range(4 if not DLY["vpre"] else 0):
    for b in range(4):
        for hf in range(2):
            a("ds_read_b64_tr_b16 %s, v%d offset:%d" % (vr(VF + (s * 4 + b) * 4 + hf * 2, 2), V_VR, ((16 * s + 2 * hf) * RP + b * 32) if DLY["dma"] else (s * 32 * VROW + hf * 4 * VROW + b * 32)))
a.lab("L_Anotr")
for s in range(4):
    a("ds_read_b128 %s, v%d offset:%d" % (vr(PF + 4 * s, 4), V_PR, PL + 64 * s))
for w in range(4):
    a("ds_read_b128 %s, v%d offset:%d" % (vr(48 + 4 * w, 4), V_Z, ST + 16 * w))
a("s_waitcnt lgkmcnt(4)")
for s in range(4):
    for b in range(4):
        a("v_mfma_f32_16x16x32_bf16 %s, %s, %s, 0" % (vr(ACC + (s * 4 + b) * 4, 4), vr(PF + 4 * s, 4), vr(VF + (s * 4 + b) * 4, 4)))
    if s == 0:
        a("s_waitcnt lgkmcnt(0)")
        a("v_max3_f32 v16, v48, v52, v56")
        a("v_max3_f32 v18, v50, v54, v58")
        a("v_max_f32 v16, v16, v60")
        a("v_max_f32 v18, v18, v62")
        for w in range(4):
            a("v_sub_f32 v%d, v%d, v16" % (48 + 4 * w, 48 + 4 * w))
            a("v_sub_f32 v%d, v%d, v18" % (50 + 4 * w, 50 + 4 * w))
    if s == 1:
        for w in range(4):
            a("v_mul_f32 v%d, 0x%x, v%d" % (48 + 4 * w, LOG2E, 48 + 4 * w))
            a("v_mul_f32 v%d, 0x%x, v%d" % (50 + 4 * w, LOG2E, 50 + 4 * w))
        for w in range(4):
            a("v_exp_f32 v%d, v%d" % (48 + 4 * w, 48 + 4 * w))
            a("v_exp_f32 v%d, v%d" % (50 + 4 * w, 50 + 4 * w))
    if s == 2:
        a("v_mul_f32 v17, v48, v49")
        a("v_mul_f32 v19, v50, v51")
        for w in range(1, 4):
            a("v_fmac_f32 v17, v%d, v%d" % (48 + 4 * w, 49 + 4 * w))
            a("v_fmac_f32 v19, v%d, v%d" % (50 + 4 * w, 51 + 4 * w))
        for b in range(4):
            for h in range(2):
                a("v_mul_f32 v%d, v%d, v%d" % (20 + b * 2 + h, 48 + 2 * h, ACC + b * 4 + h))
for b in range(4):
    for h in range(2):
        a("v_fmac_f32 v%d, v%d, v%d" % (20 + b * 2 + h, 48 + 4 + 2 * h, ACC + (4 + b) * 4 + h))
for b in range(4):
    for h in range(2):
        a("v_fmac_f32 v%d, v%d, v%d" % (20 + b * 2 + h, 48 + 8 + 2 * h, ACC + (8 + b) * 4 + h))
a("s_nop 1")
for b in range(4):
    for h in range(2):
        a("v_fmac_f32 v%d, v%d, v%d" % (20 + b * 2 + h, 48 + 12 + 2 * h, ACC + (12 + b) * 4 + h))
bar()
set_exec_lt(16)
for h in range(2):
    for b in range(4):
        a("buffer_store_dword v%d, v%d, %s, s%d offen offset:%d sc1" % (20 + b * 2 + h, V_L4, sr(SRD_WS, 4), S_T0 + 2 * h + b // 2, (b % 2) * 2048))
a("s_cmp_lg_u32 s%d, 0" % S_WAVE)
a("s_cbranch_scc1 L_Askipml")
set_exec_lt(1)
a("buffer_store_dwordx2 v[16:17], v%d, %s, s%d offen sc1" % (V_Z, sr(SRD_WS, 4), S_T0 + 4))
a("buffer_store_dwordx2 v[18:19], v%d, %s, s%d offen offset:256 sc1" % (V_Z, sr(SRD_WS, 4), S_T0 + 4))
a.lab("L_Askipml")
exec_all()
a("v_mov_b32 v%d, s%d" % (V_STW, S_WAVE))
a("v_lshlrev_b32 v%d, 4, v%d" % (V_STW, V_STW))
stamp(6, True)
bar()
a("s_cmp_lg_u32 s%d, 0x%x" % (S_L, BLK))
a("s_cbranch_scc1 L_Aend")
bar(5)
a("s_add_u32 s%d, s%d, 0x%x" % (S_L, S_L, LS))
a("s_branch L_Aloop")
a.lab("L_Aend")
stamp_flush()
a("s_endpgm")

a.lab("L_G")
V_TS = 63
if DLY["prio"]:
    a("s_setprio %d" % DLY["prio"])
stamp_init()
stamp(0)
BF = 64
RAW = 128
PW = 192
XP, YP = 16, 20
FT, DT, TT = 24, 32, 40
DD = 48
GA = 48
V_MF, V_MB, V_L16, V_AR, V_TR, V_PAIR, V_ZERO, V_T = 2, 3, 4, 5, 6, 7, 8, 9
V_O1, V_O2, V_B1, V_TAG = 10, 11, 12, 62
a("v_cmp_gt_u32 vcc, 56, v1")
a("v_mov_b32 v%d, 0" % V_ZERO)
a("v_lshlrev_b32 v%d, 4, v1" % V_L16)
a("v_cndmask_b32 v%d, 0, 1.0, vcc" % V_MF)
a("v_cndmask_b32 v%d, 0, -1, vcc" % V_MB)
a("v_lshrrev_b32 v%d, 4, v1" % V_T)
a("v_lshlrev_b32 v%d, 4, v%d" % (V_AR, V_T))
a("v_and_b32 v32, 15, v1")
a("v_lshrrev_b32 v33, 2, v32")
a("v_lshl_add_u32 v33, v%d, 3, v33" % V_T)
a("v_lshlrev_b32 v33, 5, v33")
a("v_and_b32 v34, 3, v32")
a("v_lshl_add_u32 v%d, v34, 3, v33" % V_TR)
a("v_lshrrev_b32 v%d, 1, v1" % V_PAIR)
a("v_lshlrev_b32 v%d, 2, v%d" % (V_PAIR, V_PAIR))
for i in range(4):
    a("v_mov_b32 v%d, 0" % (XP + i))
a("s_cmp_eq_u32 s%d, 4" % S_WAVE)
a("s_cbranch_scc1 L_G0")
a("s_cmp_eq_u32 s%d, 5" % S_WAVE)
a("s_cbranch_scc1 L_G1")
a("s_cmp_eq_u32 s%d, 6" % S_WAVE)
a("s_cbranch_scc1 L_G2")
a("s_branch L_G3")


def tr_frags(lds_base):
    a("s_waitcnt lgkmcnt(0)")
    for s in range(14):
        for hf in range(2):
            a("ds_read_b64_tr_b16 %s, v%d offset:%d" % (vr(BF + 4 * s + 2 * hf, 2), V_TR, lds_base + s * 1024 + hf * 128))
    a("s_waitcnt lgkmcnt(0)")


def load_rows(srd_lo, base_ptr, row0_sgpr, nrows):
    a("s_mul_i32 s%d, s%d, 896" % (S_T0, row0_sgpr))
    srd(srd_lo, base_ptr, nrows * 896, S_T0)
    for i in range(nrows // 4):
        a("s_mov_b32 s%d, %d" % (S_T0 + 1 + i, i * 4 * 896))
    set_exec_lt(56)
    for r in range(nrows):
        a("buffer_load_dwordx4 %s, v%d, %s, s%d offen offset:%d nt" % (vr(RAW + 4 * r, 4), V_L16, sr(srd_lo, 4), S_T0 + 1 + r // 4, (r % 4) * 896))
    exec_all()


def perm_rows(nrows):
    for i in range(nrows // 2):
        for d in range(4):
            lo = RAW + 4 * (2 * i) + d
            hi = RAW + 4 * (2 * i + 1) + d
            a("v_perm_b32 v%d, v%d, v%d, s%d" % (PW + i * 8 + 2 * d, hi, lo, S_SEL0))
            a("v_perm_b32 v%d, v%d, v%d, s%d" % (PW + i * 8 + 2 * d + 1, hi, lo, S_SEL1))


def part_gemv(acc, npairs):
    for i in range(npairs):
        for col in range(8):
            if i == 0:
                a("v_dot2_f32_bf16 v%d, v%d, s%d, 0" % (acc + col, PW + col, S_PAIR))
            else:
                a("v_dot2_f32_bf16 v%d, v%d, s%d, v%d" % (acc + col, PW + i * 8 + col, S_PAIR + i, acc + col))
    a("s_nop 2")


def tag_issue():
    a("s_mov_b32 s%d, 0x%x" % (S_T0, EPOCH))
    a("buffer_load_dword v%d, v%d, %s, s%d offen sc1" % (V_TAG, V_ZERO, sr(SRD_WS, 4), S_T0))


def tag_finish(wait=True):
    if wait:
        a("s_waitcnt vmcnt(0)")
    a("v_readfirstlane_b32 s%d, v%d" % (S_TAG, V_TAG))
    a("s_add_u32 s%d, s%d, 0x9e3779b9" % (S_TAG, S_TAG))


def v_dma(half):
    a("s_lshl_b32 s%d, s%d, 25" % (S_T0, S_G))
    a("s_lshl_b32 s%d, s%d, 16" % (S_T0 + 1, S_C))
    a("s_add_u32 s%d, s%d, s%d" % (S_T0, S_T0, S_T0 + 1))
    a("s_add_u32 s%d, s%d, %d" % (S_T0, S_T0, 61440 * 512 + half * 32768))
    srd(48, S_V, 32768, S_T0)
    for i in range(32):
        a("s_mov_b32 m0, %d" % (VSTB + (32 * half + i) * RP))
        a("s_mov_b32 s%d, %d" % (S_T0 + 2 + (i % 8), i * 1024))
        a("buffer_load_dwordx4 v%d, s[48:51], s%d offen nt lds" % (V_L16, S_T0 + 2 + (i % 8)))


a.lab("L_G0")
srd(SRD_B, S_X, 896)
a("buffer_load_dwordx4 %s, v%d, %s, 0 offen" % (vr(XP, 4), V_L16, sr(SRD_B, 4)))
tag_issue()
a("s_lshl_b32 s%d, s%d, 10" % (S_A0, S_G))
a("s_lshl_b32 s%d, s%d, 5" % (S_T0 + 1, S_C))
a("s_add_u32 s%d, s%d, s%d" % (S_A0, S_A0, S_T0 + 1))
srd(SRD_A, S_WQ, 448 * 8192, S_A0)
a("s_sub_u32 s%d, s%d, s%d" % (SRD_A + 2, SRD_A + 2, S_A0))
a("v_lshrrev_b32 v32, 1, v1")
a("v_lshlrev_b32 v32, 13, v32")
a("v_and_b32 v33, 1, v1")
a("v_lshl_add_u32 v32, v33, 4, v32")
for i in range(14):
    a("s_mov_b32 s%d, %d" % (S_T0 + 2 + i, i * 32 * 8192))
sleep(DLY["wqd"])
for i in range(14):
    a("buffer_load_dwordx4 %s, v32, %s, s%d offen nt" % (vr(BF + 4 * i, 4), sr(SRD_A, 4), S_T0 + 2 + i))
bar()
for i in range(14):
    a("s_waitcnt vmcnt(%d)" % (13 - i))
    a("ds_write_b128 v%d, %s offset:%d" % (V_L16, vr(BF + 4 * i, 4), WQS + 1024 * i))
tr_frags(WQS)
tag_finish(False)
a("v_lshlrev_b32 v%d, 1, v%d" % (V_O1, V_PAIR))
stamp(1)
a.lab("L_G0loop")
layernorm(XP, YP, FT, DT, TT, V_MF, V_MB, False)
gemv16(YP, YL, V_L16, V_AR, RAW, BF, DD)
a("v_mov_b32_dpp v%d, v%d quad_perm:[1,0,3,2] row_mask:0xf bank_mask:0xf" % (TT, DD))
a("v_mov_b32 v%d, s%d" % (TT + 1, S_TAG))
a("v_cvt_pk_bf16_f32 v%d, v%d, v%d" % (TT, DD, TT))
a("s_mov_b32 exec_lo, 0x5555")
a("s_mov_b32 exec_hi, 0")
a("s_cmp_lg_u32 s%d, 0x%x" % (S_L, BLK))
a("s_cbranch_scc1 L_G0second")
a("s_lshl_b32 s%d, s%d, 1" % (S_T0, S_A0))
a("buffer_store_dwordx2 v[%d:%d], v%d, %s, s%d offen sc1" % (TT, TT + 1, V_O1, sr(SRD_WS, 4), S_T0))
exec_all()
stamp(2)
sleep(DLY["chk"])
a("v_lshlrev_b32 v%d, 5, v1" % TT)
a("s_mov_b32 s%d, 0" % S_CNT)
a("s_mov_b32 s%d, 0x%x" % (S_T0 + 1, DONE))
a("buffer_load_dwordx4 v[48:51], v%d, %s, s%d offen sc1" % (TT, sr(SRD_WS, 4), S_T0 + 1))
a("buffer_load_dwordx4 v[52:55], v%d, %s, s%d offen offset:16 sc1" % (TT, sr(SRD_WS, 4), S_T0 + 1))
bar(2)
a("s_branch L_flagchk")
a.lab("L_flagpoll")
a("buffer_load_dwordx4 v[48:51], v%d, %s, s%d offen sc1" % (TT, sr(SRD_WS, 4), S_T0 + 1))
a("buffer_load_dwordx4 v[52:55], v%d, %s, s%d offen offset:16 sc1" % (TT, sr(SRD_WS, 4), S_T0 + 1))
a.lab("L_flagchk")
a("s_waitcnt vmcnt(0)")
for r in range(48, 56):
    a("v_xor_b32 v%d, s%d, v%d" % (r, S_TAG, r))
a("v_or3_b32 v48, v48, v49, v50")
a("v_or3_b32 v51, v51, v52, v53")
a("v_or3_b32 v48, v48, v54, v55")
a("v_or_b32 v48, v48, v51")
a("v_cmp_ne_u32 vcc, 0, v48")
a("s_add_u32 s%d, s%d, 1" % (S_CNT, S_CNT))
a("s_cbranch_vccz L_flagdone")
sleep(DLY["fr"])
a("s_cmp_lt_u32 s%d, 0x%x" % (S_CNT, POLL_LIMIT))
a("s_cbranch_scc1 L_flagpoll")
a.lab("L_flagdone")
cnt_stamp(47)
stamp(3)
bar(6)
a("s_add_u32 s%d, s%d, 0x%x" % (S_T0 + 8, S_L, oXN))
set_exec_lt(56)
poll([(XP, 4, V_L16, "s%d" % (S_T0 + 8), 0)], TT, DLY["x2"], cidx=48)
exec_all()
stamp(4)
a("s_add_u32 s%d, s%d, 0x%x" % (S_L, S_L, LS))
a("s_branch L_G0loop")
a.lab("L_G0second")
a("s_add_u32 s%d, s%d, 0x%x" % (S_T0, S_A0, BLK + oQN))
a("buffer_store_dword v%d, v%d, %s, s%d offen sc1" % (TT, V_PAIR, sr(SRD_WS, 4), S_T0))
exec_all()
stamp(5)
bar()
stamp_flush()
a("s_endpgm")

a.lab("L_G1")
bar()
a("s_setprio 0")
if DLY["dma"] == 1:
    v_dma(0)
if DLY["wlate"]:
    bar(2)
else:
    sleep(DLY["wdly"])
a("s_mul_i32 s%d, s%d, 224" % (S_A0, S_G))
a("s_lshl_b32 s%d, s%d, 3" % (S_T0 + 1, S_CH))
a("s_add_u32 s%d, s%d, s%d" % (S_A0, S_A0, S_T0 + 1))
srd(SRD_B, S_B1, 3584)
a("v_lshlrev_b32 v%d, 1, v1" % TT)
a("s_lshl_b32 s%d, s%d, 1" % (S_A1, S_A0))
a("buffer_load_ushort v%d, v%d, %s, s%d offen" % (V_B1, TT, sr(SRD_B, 4), S_A1))
srd(SRD_A, S_W1, 448 * 3584, S_A1)
a("s_sub_u32 s%d, s%d, s%d" % (SRD_A + 2, SRD_A + 2, S_A1))
a("s_mov_b32 s%d, 3584" % (S_T0 + 1))
a("v_mul_lo_u32 v32, v1, s%d" % (S_T0 + 1))
a("s_cmp_ge_u32 s%d, %d" % (S_C, 0 if DLY["xnow"] else 28))
a("s_cbranch_scc1 L_G1skipw")
for i in range(7):
    a("s_mov_b32 s%d, %d" % (S_T0 + 2 + i, i * 64 * 3584))
for i in range(7):
    a("buffer_load_dwordx4 %s, v32, %s, s%d offen nt" % (vr(BF + 4 * i, 4), sr(SRD_A, 4), S_T0 + 2 + i))
load_rows(SRD_C, S_W2, S_A0, 8)
a.lab("L_G1skipw")
a("s_setprio %d" % DLY["prio"])
if DLY["dma"] == 1:
    bar()
    a("s_waitcnt vmcnt(16)")
    a("s_cmp_lt_u32 s%d, 28" % S_C)
    a("s_cbranch_scc1 L_G1w")
    a("s_waitcnt vmcnt(0)")
    a.lab("L_G1w")
    bar(4)
else:
    bar(3 if DLY["wlate"] else 5)
a("s_waitcnt vmcnt(0)")
a("v_lshlrev_b32 v%d, 5, v1" % TT)
for i in range(7):
    a("ds_write_b128 v%d, %s offset:%d" % (TT, vr(BF + 4 * i, 4), W1S + 2048 * i))
tr_frags(W1S)
perm_rows(8)
a("v_lshlrev_b32 v%d, 16, v%d" % (V_B1, V_B1))
a("v_lshlrev_b32 v%d, 13, v1" % V_O1)
a("v_add_u32 v%d, 4096, v%d" % (V_O2, V_O1))
a("s_mul_i32 s%d, s%d, 28" % (S_A2, S_G))
a("s_add_u32 s%d, s%d, s%d" % (S_A2, S_A2, S_CH))
a("s_lshl_b32 s%d, s%d, 4" % (S_A2, S_A2))
a("s_add_u32 s%d, s%d, 0x%x" % (S_A2, S_A2, oR2))
if DLY["c1"]:
    a("s_cmp_ge_u32 s%d, 28" % S_C)
    a("s_cbranch_scc1 L_G1noclr")
    a("s_mul_i32 s%d, s%d, 28" % (S_T0, S_G))
    a("s_add_u32 s%d, s%d, s%d" % (S_T0, S_T0, S_C))
    a("s_mul_i32 s%d, s%d, 7168" % (S_T0, S_T0))
    a("s_add_u32 s%d, s%d, 0x%x" % (S_T0, S_T0, BLK + LS))
    a("s_add_u32 s%d, s%d, 4096" % (S_T0 + 1, S_T0))
    for i in range(4):
        a("v_mov_b32 v%d, -1" % (FT + i))
    for i in range(7):
        a("buffer_store_dwordx4 %s, v%d, %s, s%d offen offset:%d sc1" % (vr(FT, 4), V_L16, sr(SRD_WS, 4), S_T0 + i // 4, (i % 4) * 1024))
    a.lab("L_G1noclr")
a.lab("L_G1loop")
bar()
a("s_add_u32 s%d, s%d, 0x%x" % (S_T0 + 8, S_L, oX1))
set_exec_lt(56)
poll([(XP, 4, V_L16, "s%d" % (S_T0 + 8), 0)], TT, DLY["x1"], cidx=48)
exec_all()
stamp(1, True)
layernorm(XP, YP, FT, DT, TT, V_MF, V_MB, True)
layernorm(YP, XP, FT, DT, TT, V_MF, V_MB, True)
gemv16(XP, YL2, V_L16, V_AR, RAW, BF, DD)
a("v_cvt_pk_bf16_f32 v%d, v%d, v%d" % (TT, DD, DD))
a("v_and_b32 v%d, 0xffff0000, v%d" % (TT, TT))
a("v_add_f32 v%d, v%d, v%d" % (TT, TT, V_B1))
a("v_cvt_pk_bf16_f32 v%d, v%d, v%d" % (TT, TT, TT))
a("v_and_b32 v%d, 0xffff0000, v%d" % (TT, TT))
a("v_mul_f32 v%d, v%d, v%d" % (TT + 1, TT, TT))
a("v_mov_b32 v%d, 0xc0135761" % (TT + 2))
a("v_fmac_f32 v%d, 0xbdd2d3e8, v%d" % (TT + 2, TT + 1))
a("v_mul_f32 v%d, v%d, v%d" % (TT + 2, TT + 2, TT))
a("v_exp_f32 v%d, v%d" % (TT + 2, TT + 2))
a("s_add_u32 s%d, s%d, s%d" % (S_T0, S_A2, S_L))
a("v_add_f32 v%d, 1.0, v%d" % (TT + 2, TT + 2))
a("v_rcp_f32 v%d, v%d" % (TT + 2, TT + 2))
a("s_nop 0")
a("v_mul_f32 v%d, v%d, v%d" % (TT + 3, TT, TT + 2))
a("s_nop 1")
a("v_mov_b32_dpp v%d, v%d quad_perm:[1,0,3,2] row_mask:0xf bank_mask:0xf" % (TT + 4, TT + 3))
a("s_nop 0")
a("v_cvt_pk_bf16_f32 v%d, v%d, v%d" % (TT + 4, TT + 3, TT + 4))
a("s_nop 0")
for i in range(4):
    a("v_readlane_b32 s%d, v%d, %d" % (S_PAIR + i, TT + 4, 2 * i))
a("s_nop 1")
part_gemv(GA, 4)
a("s_cmp_ge_u32 s%d, 28" % S_C)
a("s_cbranch_scc1 L_G1skipst")
set_exec_lt(56)
a("buffer_store_dwordx4 %s, v%d, %s, s%d offen sc1" % (vr(GA, 4), V_O1, sr(SRD_WS, 4), S_T0))
a("buffer_store_dwordx4 %s, v%d, %s, s%d offen sc1" % (vr(GA + 4, 4), V_O2, sr(SRD_WS, 4), S_T0))
exec_all()
a.lab("L_G1skipst")
stamp(2, True)
bar()
a("s_cmp_lg_u32 s%d, 0x%x" % (S_L, BLK))
a("s_cbranch_scc1 L_G1end")
bar(7)
a("s_add_u32 s%d, s%d, 0x%x" % (S_L, S_L, LS))
a("s_branch L_G1loop")
a.lab("L_G1end")
stamp_flush()
a("s_endpgm")

a.lab("L_G2")
for i in range(4):
    a("v_mov_b32 v%d, 0" % (FT + i))
set_exec_lt(32)
a("ds_write_b128 v%d, %s offset:%d" % (V_L16, vr(FT, 4), QL + 1024))
set_exec_lt(16)
a("ds_write_b128 v%d, %s offset:%d" % (V_L16, vr(FT, 4), PL + 512))
set_exec_lt(1)
a("ds_write_b32 v%d, v%d offset:%d" % (V_ZERO, FT, CNT))
exec_all()
a("s_waitcnt lgkmcnt(0)")
tag_issue()
bar()
tag_finish()
sleep(DLY["f"])
a("s_lshl_b32 s%d, s%d, 11" % (S_T0 + 8, S_G))
a("v_lshlrev_b32 v%d, 5, v1" % (TT + 1))
a("s_mov_b32 s%d, 0" % S_CNT)
a.lab("L_q0poll")
a("buffer_load_dwordx4 v[48:51], v%d, %s, s%d offen sc1" % (TT + 1, sr(SRD_WS, 4), S_T0 + 8))
a("buffer_load_dwordx4 v[52:55], v%d, %s, s%d offen offset:16 sc1" % (TT + 1, sr(SRD_WS, 4), S_T0 + 8))
a("s_waitcnt vmcnt(0)")
for r in (49, 51, 53, 55):
    a("v_xor_b32 v%d, s%d, v%d" % (r, S_TAG, r))
a("v_or3_b32 v49, v49, v51, v53")
a("v_or_b32 v49, v49, v55")
a("v_cmp_ne_u32 vcc, 0, v49")
a("s_add_u32 s%d, s%d, 1" % (S_CNT, S_CNT))
a("s_cbranch_vccz L_q0done")
sleep(DLY["fr"])
a("s_cmp_lt_u32 s%d, 0x%x" % (S_CNT, POLL_LIMIT))
a("s_cbranch_scc1 L_q0poll")
a.lab("L_q0done")
cnt_stamp(46)
for i in range(4):
    a("v_mov_b32 v%d, v%d" % (FT + i, 48 + 2 * i))
a("ds_write_b128 v%d, %s offset:%d" % (V_L16, vr(FT, 4), QL))
a("s_waitcnt lgkmcnt(0)")
stamp(2)
bar()
if DLY["wlate"]:
    bar()
a("s_setprio 0")
a("s_lshl_b32 s%d, s%d, 9" % (S_A0, S_G))
a("s_lshl_b32 s%d, s%d, 4" % (S_T0 + 1, S_C))
a("s_add_u32 s%d, s%d, s%d" % (S_A0, S_A0, S_T0 + 1))
load_rows(SRD_C, S_WO, S_A0, 16)
a("s_setprio %d" % DLY["prio"])
if not DLY["wlate"]:
    bar()
a("v_lshlrev_b32 v%d, 13, v1" % V_O1)
a("v_add_u32 v%d, 4096, v%d" % (V_O2, V_O1))
a("s_lshl_b32 s%d, s2, 4" % S_A0)
a("s_add_u32 s%d, s%d, 0x%x" % (S_A0, S_A0, oR1))
a("s_lshl_b32 s%d, s%d, 16" % (S_A1, S_G))
a("s_lshl_b32 s%d, s%d, 11" % (S_T0 + 1, S_C))
a("s_add_u32 s%d, s%d, s%d" % (S_A1, S_A1, S_T0 + 1))
a("s_lshl_b32 s%d, s%d, 9" % (S_A2, S_G))
a("s_lshr_b32 s%d, s%d, 4" % (S_T0 + 1, S_C))
a("s_lshl_b32 s%d, s%d, 8" % (S_T0 + 1, S_T0 + 1))
a("s_add_u32 s%d, s%d, s%d" % (S_A2, S_A2, S_T0 + 1))
a("s_add_u32 s%d, s%d, 0x%x" % (S_A2, S_A2, oML))
V_PO, V_MO = 13, 14
a("v_and_b32 v%d, 31, v1" % TT)
a("v_lshrrev_b32 v%d, 5, v1" % (TT + 1))
a("v_lshlrev_b32 v%d, 6, v%d" % (V_PO, TT))
a("v_lshl_add_u32 v%d, v%d, 5, v%d" % (V_PO, TT + 1, V_PO))
a("v_lshlrev_b32 v%d, 3, v%d" % (V_MO, TT))
if DLY["wlate"]:
    bar(2)
    a("s_waitcnt vmcnt(0)")
    perm_rows(16)
    a("s_branch L_G2mid")
else:
    a("s_waitcnt vmcnt(0)")
    perm_rows(16)
a.lab("L_G2loop")
bar(2)
a.lab("L_G2mid")
a("s_add_u32 s%d, s%d, s%d" % (S_T0 + 8, S_A1, S_L))
a("s_add_u32 s%d, s%d, s%d" % (S_T0 + 9, S_A2, S_L))
poll([(48, 4, V_PO, "s%d" % (S_T0 + 8), 0), (52, 4, V_PO, "s%d" % (S_T0 + 8), 16), (56, 2, V_MO, "s%d" % (S_T0 + 9), 0)], TT, DLY["p"], delay0=DLY["p0"], retry0=DLY["r0"], cidx=48)
stamp(3, True)
a("v_mov_b32 v58, v56")
a("s_nop 1")
dpp_reduce64("v_max_f32", [58])
a("v_readlane_b32 s%d, v58, 63" % S_T0)
a("s_nop 1")
a("v_subrev_f32 v58, s%d, v56" % S_T0)
a("v_mul_f32 v58, 0x%x, v58" % LOG2E)
a("v_exp_f32 v58, v58")
a("s_nop 0")
for i in range(4):
    a("v_pk_mul_f32 %s, %s, v[58:59] op_sel_hi:[1,0]" % (vr(48 + 2 * i, 2), vr(48 + 2 * i, 2)))
a("v_mul_f32 v57, v57, v58")
a("s_nop 1")
dpp_reduce32("v_add_f32", list(range(48, 56)) + [57])
a("s_add_u32 s%d, s%d, s%d" % (S_T0, S_A0, S_L))
a("v_rcp_f32 v58, v57")
a("s_nop 0")
for i in range(4):
    a("v_pk_mul_f32 %s, %s, v[58:59] op_sel_hi:[1,0]" % (vr(48 + 2 * i, 2), vr(48 + 2 * i, 2)))
for i in range(4):
    a("v_cvt_pk_bf16_f32 v%d, v%d, v%d" % (TT + i, 48 + 2 * i, 49 + 2 * i))
a("s_nop 0")
for i in range(4):
    a("v_readlane_b32 s%d, v%d, 31" % (S_PAIR + i, TT + i))
    a("v_readlane_b32 s%d, v%d, 63" % (S_PAIR + 4 + i, TT + i))
a("s_nop 1")
part_gemv(GA, 8)
set_exec_lt(56)
a("buffer_store_dwordx4 %s, v%d, %s, s%d offen sc1" % (vr(GA, 4), V_O1, sr(SRD_WS, 4), S_T0))
a("buffer_store_dwordx4 %s, v%d, %s, s%d offen sc1" % (vr(GA + 4, 4), V_O2, sr(SRD_WS, 4), S_T0))
exec_all()
stamp(4, True)
bar()
a("s_cmp_lg_u32 s%d, 0x%x" % (S_L, BLK))
a("s_cbranch_scc1 L_G2end")
bar(4)
a("s_lshl_b32 s%d, s%d, 10" % (S_T0 + 8, S_G))
a("s_add_u32 s%d, s%d, 0x%x" % (S_T0 + 8, S_T0 + 8, BLK + oQN))
poll([(FT, 4, V_L16, "s%d" % (S_T0 + 8), 0)], TT, DLY["q"], cidx=49)
a("ds_write_b128 v%d, %s offset:%d" % (V_L16, vr(FT, 4), QL))
a("s_waitcnt lgkmcnt(0)")
stamp(5)
bar(2)
a("s_add_u32 s%d, s%d, 0x%x" % (S_L, S_L, LS))
a("s_branch L_G2loop")
a.lab("L_G2end")
stamp_flush()
a("s_endpgm")

a.lab("L_G3")
if DBG:
    a("s_memrealtime s[96:97]")
a("s_mul_i32 s%d, s2, %d" % (S_T0, 6144 if DLY["c1"] else CLR_PER_WG))
a("s_add_u32 s%d, s%d, 0x%x" % (S_T0, S_T0, BLK))
a("s_add_u32 s%d, s%d, 4096" % (S_T0 + 1, S_T0))
a("s_add_u32 s%d, s%d, 8192" % (S_T0 + 2, S_T0))
for i in range(4):
    a("v_mov_b32 v%d, -1" % (FT + i))
for i in range(0 if DLY["xnoclr"] else (6 if DLY["c1"] else 12)):
    a("buffer_store_dwordx4 %s, v%d, %s, s%d offen offset:%d sc1%s" % (vr(FT, 4), V_L16, sr(SRD_WS, 4), S_T0 + i // 4, (i % 4) * 1024, " nt" if DLY["cnt"] else ""))
tag_issue()
a("s_mul_i32 s%d, s%d, 14" % (S_A0, S_G))
a("s_add_u32 s%d, s%d, s%d" % (S_A0, S_A0, S_CP))
a("s_lshl_b32 s%d, s%d, 3" % (S_A1, S_A0))
a("s_lshl_b32 s%d, s%d, 12" % (S_A0, S_A0))
srd(SRD_A, S_X, 896)
srd(SRD_B, S_B2, 896)
a("buffer_load_dwordx2 v[%d:%d], v%d, %s, s%d offen" % (TT, TT + 1, V_ZERO, sr(SRD_A, 4), S_A1))
a("buffer_load_dwordx2 v[%d:%d], v%d, %s, s%d offen" % (TT + 2, TT + 3, V_ZERO, sr(SRD_B, 4), S_A1))
bar()
if DLY["dma"] == 1:
    a("s_setprio 0")
    v_dma(1)
    a("s_setprio %d" % DLY["prio"])
    a("s_waitcnt vmcnt(32)")
    tag_finish(False)
else:
    tag_finish()
stamp(5)
a("s_lshl_b32 s%d, s2, 3" % S_T0)
a("s_add_u32 s%d, s%d, 0x%x" % (S_T0, S_T0, DONE))
a("v_mov_b32 v%d, s%d" % (TT + 4, S_TAG))
a("v_mov_b32 v%d, s%d" % (TT + 5, S_TAG))
set_exec_lt(1)
a("buffer_store_dwordx2 v[%d:%d], v%d, %s, s%d offen sc1" % (TT + 4, TT + 5, V_ZERO, sr(SRD_WS, 4), S_T0))
exec_all()
XR, B2R = 16, 20
for i in range(2):
    a("v_lshlrev_b32 v%d, 16, v%d" % (XR + 2 * i, TT + i))
    a("v_and_b32 v%d, 0xffff0000, v%d" % (XR + 2 * i + 1, TT + i))
    a("v_lshlrev_b32 v%d, 16, v%d" % (B2R + 2 * i, TT + 2 + i))
    a("v_and_b32 v%d, 0xffff0000, v%d" % (B2R + 2 * i + 1, TT + 2 + i))
srd(SRD_A, S_OUT, 896)
a("v_min_u32 v%d, 31, v1" % V_O1)
a("v_lshlrev_b32 v%d, 4, v%d" % (V_O1, V_O1))
a("v_cmp_gt_u32 vcc, 32, v1")
a("s_nop 1")
a("v_cndmask_b32 v12, 0, 1.0, vcc")
if DLY["dma"] == 1:
    bar()
    a("s_waitcnt vmcnt(0)")
    bar()
else:
    bar(2)


def rnd4(r, t):
    a("v_cvt_pk_bf16_f32 v%d, v%d, v%d" % (t, r, r + 1))
    a("v_cvt_pk_bf16_f32 v%d, v%d, v%d" % (t + 1, r + 2, r + 3))
    a("v_lshlrev_b32 v%d, 16, v%d" % (r, t))
    a("v_and_b32 v%d, 0xffff0000, v%d" % (r + 1, t))
    a("v_lshlrev_b32 v%d, 16, v%d" % (r + 2, t + 1))
    a("v_and_b32 v%d, 0xffff0000, v%d" % (r + 3, t + 1))


G4 = 64
a.lab("L_G3loop")
bar(3)
a("s_add_u32 s%d, s%d, s%d" % (S_T0 + 8, S_A0, S_L))
a("s_add_u32 s%d, s%d, 0x%x" % (S_T0 + 8, S_T0 + 8, oR1))
poll([(G4 + 4 * i, 4, V_L16, "s%d" % (S_T0 + 8), 1024 * i) for i in range(4)], TT, DLY["r1"], retry0=DLY["r0"], cidx=48)
stamp(1, True)
for i in range(2):
    a("v_pk_add_f32 %s, %s, %s" % (vr(G4 + 2 * i, 2), vr(G4 + 2 * i, 2), vr(G4 + 4 + 2 * i, 2)))
    a("v_pk_add_f32 %s, %s, %s" % (vr(G4 + 8 + 2 * i, 2), vr(G4 + 8 + 2 * i, 2), vr(G4 + 12 + 2 * i, 2)))
for i in range(2):
    a("v_pk_add_f32 %s, %s, %s" % (vr(G4 + 2 * i, 2), vr(G4 + 2 * i, 2), vr(G4 + 8 + 2 * i, 2)))
a("s_add_u32 s%d, s%d, s%d" % (S_T0, S_A1, S_L))
a("s_add_u32 s%d, s%d, 0x%x" % (S_T0, S_T0, oX1))
dpp_reduce64("v_add_f32", [G4, G4 + 1, G4 + 2, G4 + 3])
rnd4(G4, TT)
for i in range(2):
    a("v_pk_add_f32 %s, %s, %s" % (vr(XR + 2 * i, 2), vr(XR + 2 * i, 2), vr(G4 + 2 * i, 2)))
rnd4(XR, TT)
a("s_cmp_ge_u32 s%d, 14" % S_C)
a("s_cbranch_scc1 L_G3skipx1")
a("s_mov_b32 exec_lo, 0")
a("s_mov_b32 exec_hi, 0x80000000")
a("buffer_store_dwordx2 v[%d:%d], v%d, %s, s%d offen sc1" % (TT, TT + 1, V_ZERO, sr(SRD_WS, 4), S_T0))
exec_all()
a.lab("L_G3skipx1")
stamp(2, True)
bar(2)
a("s_add_u32 s%d, s%d, s%d" % (S_T0 + 8, S_A0, S_L))
a("s_add_u32 s%d, s%d, 0x%x" % (S_T0 + 8, S_T0 + 8, oR2))
poll([(G4 + 4 * i, 4, V_L16, "s%d" % (S_T0 + 8), 1024 * i) for i in range(3)] + [(G4 + 12, 4, V_O1, "s%d" % (S_T0 + 8), 3072)], TT, DLY["r2"], cidx=49)
stamp(3, True)
for i in range(2):
    a("v_pk_mul_f32 %s, %s, v[12:13] op_sel_hi:[1,0]" % (vr(G4 + 12 + 2 * i, 2), vr(G4 + 12 + 2 * i, 2)))
for i in range(2):
    a("v_pk_add_f32 %s, %s, %s" % (vr(G4 + 2 * i, 2), vr(G4 + 2 * i, 2), vr(G4 + 4 + 2 * i, 2)))
    a("v_pk_add_f32 %s, %s, %s" % (vr(G4 + 8 + 2 * i, 2), vr(G4 + 8 + 2 * i, 2), vr(G4 + 12 + 2 * i, 2)))
for i in range(2):
    a("v_pk_add_f32 %s, %s, %s" % (vr(G4 + 2 * i, 2), vr(G4 + 2 * i, 2), vr(G4 + 8 + 2 * i, 2)))
a("s_add_u32 s%d, s%d, s%d" % (S_T0, S_A1, S_L))
a("s_add_u32 s%d, s%d, 0x%x" % (S_T0, S_T0, oXN))
dpp_reduce64("v_add_f32", [G4, G4 + 1, G4 + 2, G4 + 3])
rnd4(G4, TT)
for i in range(2):
    a("v_pk_add_f32 %s, %s, %s" % (vr(G4 + 2 * i, 2), vr(G4 + 2 * i, 2), vr(B2R + 2 * i, 2)))
rnd4(G4, TT)
for i in range(2):
    a("v_pk_add_f32 %s, %s, %s" % (vr(XR + 2 * i, 2), vr(XR + 2 * i, 2), vr(G4 + 2 * i, 2)))
rnd4(XR, TT)
a("s_cmp_lg_u32 s%d, 0x%x" % (S_L, BLK))
a("s_cbranch_scc1 L_G3final")
a("s_cmp_ge_u32 s%d, 14" % S_C)
a("s_cbranch_scc1 L_G3skipx2")
a("s_mov_b32 exec_lo, 0")
a("s_mov_b32 exec_hi, 0x80000000")
a("buffer_store_dwordx2 v[%d:%d], v%d, %s, s%d offen sc1" % (TT, TT + 1, V_ZERO, sr(SRD_WS, 4), S_T0))
exec_all()
a.lab("L_G3skipx2")
stamp(4, True)
bar(4)
a("s_add_u32 s%d, s%d, 0x%x" % (S_L, S_L, LS))
a("s_branch L_G3loop")
a.lab("L_G3final")
a("s_cmp_ge_u32 s%d, 14" % S_C)
a("s_cbranch_scc1 L_G3skipout")
a("s_mov_b32 exec_lo, 0")
a("s_mov_b32 exec_hi, 0x80000000")
a("buffer_store_dwordx2 v[%d:%d], v%d, %s, s%d offen" % (TT, TT + 1, V_ZERO, sr(SRD_A, 4), S_A1))
exec_all()
a.lab("L_G3skipout")
stamp(4, True)
a("s_cmp_lg_u32 s2, 0")
a("s_cbranch_scc1 L_G3skipep")
a("s_mov_b32 s%d, 0x%x" % (S_T0, EPOCH))
a("v_mov_b32 v%d, s%d" % (TT, S_TAG))
set_exec_lt(1)
a("buffer_store_dword v%d, v%d, %s, s%d offen sc1" % (TT, V_ZERO, sr(SRD_WS, 4), S_T0))
if DBG:
    a("s_memrealtime s[98:99]")
    a("s_waitcnt lgkmcnt(0)")
    a("s_sub_u32 s98, s98, s96")
    a("v_mov_b32 v%d, s98" % TT)
    srd(SRD_B, S_DBG, 256)
    a("buffer_store_dword v%d, v%d, %s, 0 offen" % (TT, V_ZERO, sr(SRD_B, 4)))
exec_all()
a.lab("L_G3skipep")
stamp_flush()
a.lab("L_end")
a("s_endpgm")

a.l.append('.section .rodata,"a"')
a.l.append(".p2align 6")
a.l.append(".amdhsa_kernel %s_kernel" % NAME)
a.l.append("  .amdhsa_next_free_vgpr 256")
a.l.append("  .amdhsa_next_free_sgpr 102")
a.l.append("  .amdhsa_accum_offset 256")
a.l.append("  .amdhsa_group_segment_fixed_size 0")
a.l.append("  .amdhsa_kernarg_size 104")
a.l.append("  .amdhsa_user_sgpr_count 2")
a.l.append("  .amdhsa_user_sgpr_kernarg_segment_ptr 1")
a.l.append("  .amdhsa_system_sgpr_workgroup_id_x 1")
a.l.append(".end_amdhsa_kernel")

out = sys.argv[1] if len(sys.argv) > 1 else "cdna_kernels/%s.s" % NAME
open(out, "w").write(a.text())
print("wrote", out, "lines", len(a.l), "lds", LDS_SIZE)
```
